```python
import torch

def _softmax(x, axis=-1):
    return torch.softmax(x, dim=axis)
def _gelu(x):
    return torch.nn.functional.gelu(x, approximate="tanh")
def _silu(x):
    return torch.nn.functional.silu(x)
def _sigmoid(x):
    return torch.sigmoid(x)
def _layernorm(x, axis=-1, eps=1e-5):
    m = x.mean(dim=axis, keepdim=True)
    v = x.var(dim=axis, keepdim=True, unbiased=False)
    return (x - m) / torch.sqrt(v + eps)
def _scatter_add(tgt, idx, src, axis=0):
    return tgt.clone().index_add_(axis, idx, src)
def _segment_sum(src, seg, n):
    out = torch.zeros((n,) + src.shape[1:], dtype=src.dtype)
    return out.index_add_(0, seg, src)
def _pad(x, pw):
    flat = tuple(v for pair in reversed(pw) for v in pair)
    return torch.nn.functional.pad(x, flat)

kernel_name = 'concat_heads__mha_block_cached__mha_block_cached__near_ridge'

def setup_inputs():

    _w = (lambda a: (lambda t: t.to(torch.bfloat16) if t.is_floating_point() else t)(torch.as_tensor(a)))
    def _A_setup():
        B, Sq, D = 16, 192, 576
        H, Sk, Dh = 32, 512, 128
        return {
            "x": _w((lambda *s: torch.randn(*s, dtype=torch.bfloat16) * 0.8)(B, Sq, D)),
            "k_cache": _w((lambda *s: torch.randn(*s, dtype=torch.bfloat16) * 0.8)(B, H, Sk, Dh)),
            "v_cache": _w((lambda *s: torch.randn(*s, dtype=torch.bfloat16) * 0.05)(B, H, Sk, Dh)),
            "wq": _w((lambda *s: torch.randn(*s, dtype=torch.bfloat16) * 0.8)(D, H * Dh) * (D ** -0.5)),
            "wo": _w((lambda *s: torch.randn(*s, dtype=torch.bfloat16) * 0.05)(H * Dh, D) * ((H * Dh) ** -0.5)),
        }
    _A_in = _A_setup()

    def _B_setup():
        B, Sq, D = 16, 192, 576
        H, Sk, Dh = 32, 512, 128
        return {
            "x": _w((lambda *s: torch.randn(*s, dtype=torch.bfloat16) * 0.8)(B, Sq, D)),
            "k_cache": _w((lambda *s: torch.randn(*s, dtype=torch.bfloat16) * 0.8)(B, H, Sk, Dh)),
            "v_cache": _w((lambda *s: torch.randn(*s, dtype=torch.bfloat16) * 0.05)(B, H, Sk, Dh)),
            "wq": _w((lambda *s: torch.randn(*s, dtype=torch.bfloat16) * 0.8)(D, H * Dh) * (D ** -0.5)),
            "wo": _w((lambda *s: torch.randn(*s, dtype=torch.bfloat16) * 0.05)(H * Dh, D) * ((H * Dh) ** -0.5)),
        }
    _B_in = _B_setup()

    return {
        "A_x": _A_in["x"],
        "A_k_cache": _A_in["k_cache"],
        "A_v_cache": _A_in["v_cache"],
        "A_wq": _A_in["wq"],
        "A_wo": _A_in["wo"],
        "B_x": _B_in["x"],
        "B_k_cache": _B_in["k_cache"],
        "B_v_cache": _B_in["v_cache"],
        "B_wq": _B_in["wq"],
        "B_wo": _B_in["wo"],
    }

def reference(A_x, A_k_cache, A_v_cache, A_wq, A_wo, B_x, B_k_cache, B_v_cache, B_wq, B_wo):
    def _A_ref(x, k_cache, v_cache, wq, wo):
        B, Sq, D = x.shape
        H, Dh = 32, 128
        q = (lambda x, *d: x.permute(*d))((x @ wq).reshape(B, Sq, H, Dh), 0, 2, 1, 3)
        scores = torch.einsum("bhqd,bhkd->bhqk", q, k_cache) * (Dh ** -0.5)
        p = _softmax(scores, axis=-1)
        o = torch.einsum("bhqk,bhkd->bhqd", p, v_cache)
        return (lambda x, *d: x.permute(*d))(o, 0, 2, 1, 3).reshape(B, Sq, H * Dh) @ wo

    def _B_ref(x, k_cache, v_cache, wq, wo):
        B, Sq, D = x.shape
        H, Dh = 32, 128
        q = (lambda x, *d: x.permute(*d))((x @ wq).reshape(B, Sq, H, Dh), 0, 2, 1, 3)
        scores = torch.einsum("bhqd,bhkd->bhqk", q, k_cache) * (Dh ** -0.5)
        p = _softmax(scores, axis=-1)
        o = torch.einsum("bhqk,bhkd->bhqd", p, v_cache)
        return (lambda x, *d: x.permute(*d))(o, 0, 2, 1, 3).reshape(B, Sq, H * Dh) @ wo

    a = _A_ref(A_x, A_k_cache, A_v_cache, A_wq, A_wo)
    b = _B_ref(B_x, B_k_cache, B_v_cache, B_wq, B_wo)
    return torch.concatenate([a, b], axis=-1)
```

```python
import re

def R(b, n=1):
    p = 'v'
    if b >= 256:
        p = 'a'; b -= 256
    return f"{p}{b}" if n == 1 else f"{p}[{b}:{b+n-1}]"

def rng(b, n): return list(range(b, b + n))

class I:
    __slots__ = ('text', 'kind', 'rd', 'wr', 'tag', 'cost', 'srcc', 'passes', 'idx', 'swr', 'srd', 'extra')
    def __init__(self, text, kind, rd=(), wr=(), tag=None, cost=1, srcc=(), passes=4, swr=(), srd=(), extra=None):
        self.text = text; self.kind = kind
        self.rd = frozenset(rd); self.wr = frozenset(wr)
        self.tag = tag; self.cost = cost; self.srcc = frozenset(srcc); self.passes = passes
        self.swr = frozenset(swr); self.srd = frozenset(srd)
        self.extra = extra
    def __repr__(self): return self.text

def mfma16(d, a, b, c):
    ct = '0' if c is None else R(c, 4)
    rd = rng(a, 4) + rng(b, 4) + ([] if c is None else rng(c, 4))
    return I(f"v_mfma_f32_16x16x32_bf16 {R(d,4)}, {R(a,4)}, {R(b,4)}, {ct}", 'mfma', rd, rng(d, 4),
             srcc=([] if c is None else rng(c, 4)), passes=4, extra=(d, c))

def valu(text, rd=(), wr=(), cost=1, swr=(), srd=()): return I(text, 'valu', rd, wr, cost=cost, swr=swr, srd=srd)
def trans(text, rd=(), wr=()): return I(text, 'trans', rd, wr, cost=2)
def perm(text, regs): return I(text, 'perm', regs, regs)
def salu(text, swr=(), srd=()): return I(text, 'salu', swr=swr, srd=srd)
def ds_read(text, addr, wr, tag=None): return I(text, 'dsr', [addr], wr, tag=tag)
def ds_write(text, rd, tag=None): return I(text, 'dsw', rd, (), tag=tag)
def vload(text, rd, wr, tag=None, srd=()): return I(text, 'vld', rd, wr, tag=tag, srd=srd)
def vstore(text, rd, tag=None, wide=True): return I(text, 'vst', rd, (), tag=tag, extra=wide)
def dma(text, rd, tag=None): return I(text, 'dma', rd, (), tag=tag, srd=['m0'])
def raw(text): return I(text, 'raw')
def label(name): return I(name + ':', 'label')
def waittag(vm=(), lg=()): return I('', 'waittag', extra=(frozenset(vm), frozenset(lg)))
def waitall(vm=True, lg=True): return I('', 'waitall', extra=(vm, lg))
def barrier(n=None): return I('s_barrier', 'barrier', tag=n)
def marker(name): return I('', 'marker', tag=name)

VALU_KINDS = ('valu', 'trans', 'perm')

def schedule(sem, valu_rate=1.3, valu_burst=2, lds_per_gap=2, vm_per_gap=1, mfma_dist=9):
    n = len(sem)
    for i, ins in enumerate(sem): ins.idx = i
    lastw = {}; readers = {}
    preds = [None] * n
    for i, ins in enumerate(sem):
        p = set()
        for r in ins.rd:
            if r in lastw: p.add(lastw[r])
        for r in ins.wr:
            if r in lastw: p.add(lastw[r])
            for q in readers.get(r, ()): p.add(q)
        for r in ins.srd:
            k = ('s', r)
            if k in lastw: p.add(lastw[k])
        for r in ins.swr:
            k = ('s', r)
            if k in lastw: p.add(lastw[k])
            for q in readers.get(k, ()): p.add(q)
        p.discard(i)
        preds[i] = p
        for r in ins.rd: readers.setdefault(r, []).append(i)
        for r in ins.srd: readers.setdefault(('s', r), []).append(i)
        for r in ins.wr: lastw[r] = i; readers[r] = []
        for r in ins.swr: lastw[('s', r)] = i; readers[('s', r)] = []
    def cls(ins):
        if ins.kind in VALU_KINDS: return 'v'
        if ins.kind in ('dsr', 'dsw'): return 'l'
        if ins.kind == 'vld': return 'm'
        return None
    queues = {'v': [], 'l': [], 'm': []}
    fences = []
    for ins in sem:
        c = cls(ins)
        if c: queues[c].append(ins)
        if ins.kind in ('label', 'raw', 'waitall', 'waittag') or (ins.kind == 'marker' and ins.tag == 'fence'):
            fences.append(ins.idx)
    out = []; pos = {}
    heads = {'v': 0, 'l': 0, 'm': 0}
    def emit(ins):
        pos[ins.idx] = len(out); out.append(ins)
    def ready(ins, cur):
        for f in fences:
            if cur < f < ins.idx: return False
        for p in preds[ins.idx]:
            if p not in pos: return False
            pi = sem[p]
            if pi.kind == 'mfma' and (pi.wr & (ins.rd | ins.wr)):
                if len(out) - pos[p] < mfma_dist: return False
            if pi.kind == 'mfma' and ins.kind in VALU_KINDS and (pi.srcc & ins.wr):
                if len(out) - pos[p] < 4: return False
            if pi.kind == 'trans' and ins.kind in VALU_KINDS and (pi.wr & ins.rd) and len(out) - pos[p] < 2: return False
            if pi.kind in VALU_KINDS and ins.kind == 'perm' and (pi.wr & ins.rd) and len(out) - pos[p] < 3: return False
        return True
    tokens = 0.0
    for ins in sem:
        c = cls(ins)
        if c:
            if ins.idx in pos: continue
            assert queues[c][heads[c]] is ins
            emit(ins); heads[c] += 1
            continue
        emit(ins)
        if ins.kind == 'marker' and ins.tag.startswith('rate='):
            valu_rate = float(ins.tag[5:]); valu_burst = max(2, valu_rate)
        if ins.kind == 'mfma':
            tokens = min(tokens + valu_rate, valu_burst + 0.0)
            nl = nm = 0
            progress = True
            while progress:
                progress = False
                q = queues['l']
                if nl < lds_per_gap and heads['l'] < len(q) and ready(q[heads['l']], ins.idx):
                    emit(q[heads['l']]); heads['l'] += 1; nl += 1; progress = True
                q = queues['v']
                if heads['v'] < len(q) and tokens >= 1.0 and ready(q[heads['v']], ins.idx):
                    tokens -= q[heads['v']].cost
                    emit(q[heads['v']]); heads['v'] += 1; progress = True
                q = queues['m']
                if nm < vm_per_gap and heads['m'] < len(q) and ready(q[heads['m']], ins.idx):
                    emit(q[heads['m']]); heads['m'] += 1; nm += 1; progress = True
    return out

def insert_waits(prog, init_vm=()):
    out = []
    vm = list(init_vm)
    lg = []
    def do_wait(nv, nl):
        nonlocal vm, lg
        parts = []
        if nv is not None and nv < len(vm):
            nv = min(nv, 63); parts.append(f"vmcnt({nv})"); vm = vm[len(vm) - nv:] if nv else []
        if nl is not None and nl < len(lg):
            nl = min(nl, 15); parts.append(f"lgkmcnt({nl})"); lg = lg[len(lg) - nl:] if nl else []
        if parts: out.append(I("s_waitcnt " + " ".join(parts), 'wait'))
    for ins in prog:
        if ins.kind == 'waitall':
            a, b = ins.extra
            parts = []
            if a: parts.append("vmcnt(0)"); vm = []
            if b: parts.append("lgkmcnt(0)"); lg = []
            out.append(I("s_waitcnt " + " ".join(parts), 'wait')); continue
        if ins.kind == 'waittag':
            tv, tl = ins.extra
            nv = nl = None
            for k, (w, t) in enumerate(vm):
                if t in tv: nv = len(vm) - 1 - k
            for k, (w, t) in enumerate(lg):
                if t in tl: nl = len(lg) - 1 - k
            do_wait(nv, nl); continue
        if ins.kind == 'setvm':
            vm = list(ins.extra); continue
        if ins.kind in ('dsr', 'dsw') and not ins.text: continue
        touched = ins.rd | ins.wr
        nv = nl = None
        if touched:
            for k, (w, t) in enumerate(vm):
                if w & touched: nv = len(vm) - 1 - k
            for k, (w, t) in enumerate(lg):
                if w & touched: nl = len(lg) - 1 - k
        do_wait(nv, nl)
        out.append(ins)
        if ins.kind in ('vld', 'vst', 'dma'): vm.append((ins.wr, ins.tag))
        if ins.kind in ('dsr', 'dsw'): lg.append((ins.wr, ins.tag))
        if ins.kind == 'stamp':
            out.append(I('s_waitcnt lgkmcnt(0)', 'wait')); lg = []
    return out

def insert_nops(prog):
    out = []
    t = 0
    w_valu = {}; w_trans = {}; w_mfma = {}; c_mfma = {}; st_data = {}
    sw_valu = {}; sw_salu = {}
    MF_RD = {4: 8, 8: 12}; MF_C = {4: 6, 8: 10}; MF_WAR = {4: 3, 8: 7}
    nnop = 0
    for ins in prog:
        if ins.kind in ('marker',) or not ins.text: continue
        if ins.kind == 'label':
            out.append(ins); continue
        need = 0
        def req(tp, d):
            nonlocal need
            need = max(need, tp + d + 1)
        k = ins.kind
        if k == 'mfma':
            for r in ins.rd:
                if r in w_valu: req(w_valu[r], 2)
                if r in w_mfma:
                    tp, ps, dbase = w_mfma[r]
                    if r in ins.srcc:
                        if ins.extra[1] == dbase and ps == ins.passes: pass
                        else: req(tp, MF_C[ps])
                    else: req(tp, MF_RD[ps])
            for r in ins.wr:
                if r in w_mfma and r not in ins.srcc:
                    tp, ps, dbase = w_mfma[r]
                    req(tp, MF_C[ps])
        elif k in VALU_KINDS:
            for r in ins.rd | ins.wr:
                if r in w_mfma: req(w_mfma[r][0], MF_RD[w_mfma[r][1]])
            for r in ins.wr:
                if r in c_mfma: req(c_mfma[r][0], MF_WAR[c_mfma[r][1]])
                if r in st_data: req(st_data[r], 2)
            if k != 'trans':
                for r in ins.rd:
                    if r in w_trans: req(w_trans[r], 1)
            if k == 'perm':
                for r in ins.rd:
                    if r in w_valu: req(w_valu[r], 2)
            if 'readfirstlane' in ins.text or 'readlane' in ins.text:
                for r in ins.rd:
                    if r in w_valu: req(w_valu[r], 1)
            for s in ins.srd:
                if s in sw_valu: req(sw_valu[s], 2)
        elif k in ('dsr', 'dsw', 'vld', 'vst', 'dma'):
            for r in ins.rd | ins.wr:
                if r in w_mfma: req(w_mfma[r][0], MF_RD[w_mfma[r][1]])
            for r in ins.wr:
                if r in st_data: req(st_data[r], 1)
            for s in ins.srd:
                if s in sw_valu: req(sw_valu[s], 5)
                if s == 'm0' and s in sw_salu: req(sw_salu[s], 1)
        if need > t:
            d = need - t
            while d > 0:
                m = min(d, 16)
                out.append(I(f"s_nop {m-1}", 'nop')); t += m; d -= m; nnop += 1
        out.append(ins)
        if k == 'mfma':
            for r in ins.wr: w_mfma[r] = (t, ins.passes, ins.extra[0]); w_valu.pop(r, None); w_trans.pop(r, None)
            for r in ins.srcc: c_mfma[r] = (t, ins.passes)
        elif k in VALU_KINDS:
            for r in ins.wr:
                w_valu[r] = t; w_mfma.pop(r, None)
                if k == 'trans': w_trans[r] = t
                else: w_trans.pop(r, None)
            for s in ins.swr: sw_valu[s] = t
        elif k == 'salu':
            for s in ins.swr: sw_salu[s] = t; sw_valu.pop(s, None)
        elif k == 'vst' and ins.extra:
            for r in ins.rd: st_data[r] = t
        elif k in ('dsr', 'vld'):
            for r in ins.wr: w_valu.pop(r, None); w_trans.pop(r, None); w_mfma.pop(r, None)
        if k == 'raw':
            m = re.match(r'\s*s_nop (\d+)', ins.text)
            t += (int(m.group(1)) + 1) if m else 1
        else:
            t += 1
    return out, nnop

def render(prog):
    s = []
    for ins in prog:
        if ins.kind == 'label': s.append(ins.text)
        elif ins.text: s.append("  " + ins.text)
    return "\n".join(s) + "\n"
```

```python
from asmlib import *
import math, struct

def f32bits(x): return struct.unpack('<I', struct.pack('<f', x))[0]

class Cfg:
    valu_rate = 1.3
    valu_burst = 2
    nt_kv = True
    o_flags = ""
    prio = 0

ACC = 160
def O_(s, qt): return ACC + (s * 3 + qt) * 4
QB = 112
def Q_(qt, t): return QB + (qt * 4 + t) * 4
XB, YB = 64, 88
def S_(buf, kt, qt): return buf + (kt * 3 + qt) * 4
NEGM = 52
def NM(qt): return NEGM + qt * 4
LB = 40
def L_(qt): return LB + qt * 4
ONES = 36
FR = 16; NFR = 5
KAD = 4
VAD = 8
VOK, VOV = 3, 2
T0, T1 = 0, 1
WADA = 4
WADB = 40
VOW = 12; VOX = 13
XF = 64; NXF = 8
def XFr(k, qt): return XF + (k % NXF) * 12 + qt * 4
LANE = 14;
SLOT = 8192; RINGB = 40960; NSLOT = 5

S_X, S_WQ, S_K, S_V, S_O = 40, 44, 48, 52, 56
S_W = 60
S_W1024 = 61
S_Q1, S_Q2 = 62, 63
S_OQ1, S_OQ2 = 64, 65
S_TMP = 66
S_THR = 67
S_SC = 68
S_CNT = 70
S_H = 71

class Frag:
    def __init__(self): self.n = 0
    def next(self):
        r = FR + (self.n % NFR) * 4; self.n += 1; return r

def tile_ring(tile):
    kind, i = tile
    if kind == 'W': return ('A' if i % 2 == 0 else 'B')
    return 'A' if kind == 'K' else 'B'

class Tiles:
    def __init__(self, seqA, seqB):
        self.seq = {'A': seqA, 'B': seqB}
        self.slot = {}
        for r in 'AB':
            for n, t in enumerate(self.seq[r]): self.slot[t] = n % NSLOT
    def base(self, tile):
        return self.slot[tile] * SLOT
    def dma(self, tile, cfg):
        kind, i = tile
        lds = self.base(tile) + (RINGB if tile_ring(tile) == 'B' else 0)
        out = []
        for c in range(2):
            if kind == 'W':
                goff = (i * 32 + c * 16) * 8192; srd = S_WQ; vo = VOW; fl = ""
            elif kind == 'K':
                goff = i * 8192 + c * 4096; srd = S_K; vo = VOK; fl = " nt" if cfg.nt_kv else ""
            else:
                goff = i * 8192 + c * 4096; srd = S_V; vo = VOV; fl = " nt" if cfg.nt_kv else ""
            g = [salu(f"s_add_u32 m0, s{S_W1024}, {lds + c * 4096}", swr=['m0']),
                 salu(f"s_mov_b32 s{S_TMP}, {goff}"),
                 dma(f"buffer_load_dwordx4 v{vo}, s[{srd}:{srd+3}], s{S_TMP} offen{fl} lds", [vo], tag=tile)]
            out.append(g)
        return out

def place_tiles(prog, tiles, cfg, preissued):
    nb = -1; first = {}; last = {}
    for ins in prog:
        if ins.kind == 'barrier' and ins.tag is not None: nb += 1
        if ins.kind == 'dsr' and ins.tag is not None:
            assert nb >= 0
            first.setdefault(ins.tag, nb); last[ins.tag] = nb
    nbar = nb + 1
    need = [[] for _ in range(nbar)]; free = [[] for _ in range(nbar + 1)]
    for t in first: need[first[t]].append(t)
    for t in last: free[last[t] + 1].append(t)
    issue = [[] for _ in range(nbar)]
    for r in 'AB':
        seq = tiles.seq[r]
        for n, t in enumerate(seq):
            if t in preissued: continue
            prev = seq[n - NSLOT]
            b = last[prev] + 1
            assert b < first[t], (t, prev, b, first[t])
            issue[b].append(t)
    out = []; nb = -1; pend = []; cnt = 0
    for ins in prog:
        if ins.kind == 'barrier' and ins.tag is not None:
            for g in pend: out.extend(g)
            pend = []
            nb += 1
            out.append(waittag(vm=need[nb], lg=free[nb]))
            out.append(ins)
            for t in sorted(issue[nb], key=lambda t: first[t]): pend.extend(tiles.dma(t, cfg))
            cnt = 0
            continue
        out.append(ins)
        if ins.kind == 'mfma' and pend:
            cnt += 1
            if cnt % 5 == 2: out.extend(pend.pop(0))
    assert not pend
    return out

def kfrag(fr, tiles, j, kt, t):
    tile = ('K', j)
    return ds_read(f"ds_read_b128 {R(fr,4)}, v{KAD+t} offset:{tiles.base(tile) + kt*4096}", KAD + t, rng(fr, 4), tag=tile)
def vfrag(fr, tiles, j, s):
    tile = ('V', j)
    return [ds_read(f"ds_read_b64_tr_b16 {R(fr+2*h,2)}, v{VAD+s} offset:{tiles.base(tile) + h*4096}", VAD + s, rng(fr + 2 * h, 2), tag=tile) for h in range(2)]
def wfrag(fr, tiles, k, T):
    tile = ('W', k)
    ad = (WADA if tile_ring(tile) == 'A' else WADB) + T
    return [ds_read(f"ds_read_b64_tr_b16 {R(fr+2*h,2)}, v{ad} offset:{tiles.base(tile) + h*1024}", ad, rng(fr + 2 * h, 2), tag=tile) for h in range(2)]
def xload(k, qt):
    so = ['0', f"s{S_Q1}", f"s{S_Q2}"][qt]
    return vload(f"buffer_load_dwordx4 {R(XFr(k,qt),4)}, v{VOX}, s[{S_X}:{S_X+3}], {so} offen offset:{k*64}", [VOX], rng(XFr(k, qt), 4))

def qk(sem, F, tiles, j, buf, usem):
    for kt in range(2):
        for t in range(4):
            fr = F.next()
            sem.append(kfrag(fr, tiles, j, kt, t))
            for qt in range(3):
                d = S_(buf, kt, qt)
                c = d if t > 0 else (NM(qt) if usem else None)
                sem.append(mfma16(d, fr, Q_(qt, t), c))

def softmax(sem, buf, addm):
    for qt in range(3):
        for kt in range(2):
            for p in range(2):
                for e in range(2):
                    r = S_(buf, kt, qt) + p * 2 + e
                    if addm: sem.append(valu(f"v_add_f32 v{r}, v{NM(qt)}, v{r}", [r, NM(qt)], [r]))
                    sem.append(trans(f"v_exp_f32 v{r}, v{r}", [r], [r]))
                r = S_(buf, kt, qt) + p * 2
                d = S_(buf, 0, qt) + kt * 2 + p
                sem.append(valu(f"v_cvt_pk_bf16_f32 v{d}, v{r}, v{r+1}", [r, r + 1], [d]))

def pv(sem, F, tiles, j, buf):
    first = (j == 0)
    for qt in range(3):
        sem.append(mfma16(L_(qt), ONES, S_(buf, 0, qt), None if first else L_(qt)))
    for s in range(8):
        fr = F.next()
        sem.extend(vfrag(fr, tiles, j, s))
        for qt in range(3):
            sem.append(mfma16(O_(s, qt), fr, S_(buf, 0, qt), None if first else O_(s, qt)))

def xlane_max(sem, r, tmp):
    sem.append(valu(f"v_mov_b32 v{tmp}, v{r}", [r], [tmp]))
    sem.append(perm(f"v_permlane32_swap_b32 v{r}, v{tmp}", [r, tmp]))
    sem.append(valu(f"v_max_f32 v{r}, v{r}, v{tmp}", [r, tmp], [r]))
    sem.append(valu(f"v_mov_b32 v{tmp}, v{r}", [r], [tmp]))
    sem.append(perm(f"v_permlane16_swap_b32 v{r}, v{tmp}", [r, tmp]))
    sem.append(valu(f"v_max_f32 v{r}, v{r}, v{tmp}", [r, tmp], [r]))

def first_max(sem, buf):
    for qt in range(3):
        m = NM(qt) + 1; a = S_(buf, 0, qt); b = S_(buf, 1, qt)
        sem.append(valu(f"v_max3_f32 v{m}, v{a}, v{a+1}, v{a+2}", [a, a + 1, a + 2], [m]))
        sem.append(valu(f"v_max3_f32 v{m}, v{m}, v{a+3}, v{b}", [m, a + 3, b], [m]))
        sem.append(valu(f"v_max3_f32 v{m}, v{m}, v{b+1}, v{b+2}", [m, b + 1, b + 2], [m]))
        sem.append(valu(f"v_max_f32 v{m}, v{m}, v{b+3}", [m, b + 3], [m]))
    for qt in range(3): xlane_max(sem, NM(qt) + 1, NM(qt) + 2)
    for qt in range(3): set_negm(sem, qt, NM(qt) + 1)

def set_negm(sem, qt, src):
    n = NM(qt)
    sem.append(valu(f"v_sub_f32 v{n}, 0, v{src}", [src], [n]))
    for e in range(1, 4): sem.append(valu(f"v_mov_b32 v{n+e}, v{n}", [n], [n + e]))

def attention(sem, F, tiles, preset):
    bufs = [XB, YB]
    sem.append(barrier(0))
    qk(sem, F, tiles, 0, bufs[0], preset)
    qk(sem, F, tiles, 1, bufs[1], preset)
    if not preset: first_max(sem, bufs[0])
    for j in range(16):
        softmax(sem, bufs[j % 2], (not preset) and j < 2)
        if j < 15: sem.append(barrier(0))
        pv(sem, F, tiles, j, bufs[j % 2])
        if j + 2 < 16: qk(sem, F, tiles, j + 2, bufs[j % 2], True)

def epilogue_norm(sem):
    for qt in range(3):
        l = L_(qt)
        sem.append(trans(f"v_rcp_f32 v{l+2}, v{l}", [l], [l + 2]))
        sem.append(valu(f"v_mov_b32 v{l+3}, v{l+2}", [l + 2], [l + 3]))
    for t in range(4):
        for qt in range(3):
            l = L_(qt)
            a = O_(2 * t, qt); b = O_(2 * t + 1, qt)
            for r in (a, a + 2, b, b + 2):
                sem.append(valu(f"v_pk_mul_f32 {R(r,2)}, {R(r,2)}, {R(l+2,2)}", [r, r + 1, l + 2, l + 3], [r, r + 1]))
            sem.append(valu(f"v_cvt_pk_bf16_f32 v{a}, v{a}, v{a+1}", [a, a + 1], [a]))
            sem.append(valu(f"v_cvt_pk_bf16_f32 v{a+1}, v{a+2}, v{a+3}", [a + 2, a + 3], [a + 1]))
            sem.append(valu(f"v_cvt_pk_bf16_f32 v{a+2}, v{b}, v{b+1}", [b, b + 1], [a + 2]))
            sem.append(valu(f"v_cvt_pk_bf16_f32 v{a+3}, v{b+2}, v{b+3}", [b + 2, b + 3], [a + 3]))

def stores(cfg):
    p = []
    p.append(valu(f"v_mbcnt_lo_u32_b32 v{T0}, -1, 0", [], [T0]))
    p.append(valu(f"v_mbcnt_hi_u32_b32 v{T0}, -1, v{T0}", [T0], [T0]))
    p.append(salu(f"s_mul_i32 s{S_TMP}, s{S_W}, {3*128*1024}"))
    p.append(salu(f"s_lshl_b32 s{S_CNT}, s{S_H}, 12"))
    p.append(salu(f"s_add_u32 s{S_TMP}, s{S_TMP}, s{S_CNT}"))
    p.append(valu(f"v_lshlrev_b32 v{T0}, 4, v{T0}", [T0], [T0]))
    p.append(valu(f"v_add_u32 v{T0}, s{S_TMP}, v{T0}", [T0], [T0]))
    for qt in range(3):
        so = ['0', f"s{S_OQ1}", f"s{S_OQ2}"][qt]
        for t in range(4):
            a = O_(2 * t, qt)
            p.append(vstore(f"buffer_store_dwordx4 {R(a,4)}, v{T0}, s[{S_O}:{S_O+3}], {so} offen offset:{t*1024}{cfg.o_flags}", rng(a, 4) + [T0]))
    return p

def att_addrs(p):
    a, b, c, d = FR, FR + 1, FR + 2, FR + 3
    p.append(valu(f"v_mbcnt_lo_u32_b32 v{a}, -1, 0", [], [a]))
    p.append(valu(f"v_mbcnt_hi_u32_b32 v{a}, -1, v{a}", [a], [a]))
    p.append(valu(f"v_and_b32 v{b}, 15, v{a}", [a], [b]))
    p.append(valu(f"v_lshrrev_b32 v{c}, 4, v{a}", [a], [c]))
    p.append(valu(f"v_xor_b32 v{d}, v{b}, v{c}", [b, c], [d]))
    p.append(valu(f"v_lshlrev_b32 v{d}, 4, v{d}", [d], [d]))
    p.append(valu(f"v_lshl_add_u32 v{KAD}, v{b}, 8, v{d}", [b, d], [KAD]))
    for t in range(1, 4): p.append(valu(f"v_xor_b32 v{KAD+t}, {t*64}, v{KAD}", [KAD], [KAD + t]))
    p.append(valu(f"v_lshrrev_b32 v{b}, 2, v{a}", [a], [b]))
    p.append(valu(f"v_and_b32 v{c}, 3, v{a}", [a], [c]))
    p.append(valu(f"v_lshlrev_b32 v{c}, 3, v{c}", [c], [c]))
    p.append(valu(f"v_lshl_add_u32 v{c}, v{b}, 8, v{c}", [b, c], [c]))
    p.append(valu(f"v_and_b32 v{d}, 7, v{b}", [b], [d]))
    p.append(valu(f"v_lshl_add_u32 v{c}, v{d}, 5, v{c}", [d, c], [c]))
    p.append(valu(f"v_add_u32 v{VAD}, {RINGB}, v{c}", [c], [VAD]))
    for s in range(1, 8): p.append(valu(f"v_xor_b32 v{VAD+s}, {s*32}, v{VAD}", [VAD], [VAD + s]))
    for e in range(4): p.append(valu(f"v_mov_b32 v{ONES+e}, 0x3f803f80", [], [ONES + e]))

def gen(cfg, name="attn_kernel"):
    P = []
    def sr(t): P.append(raw(t))
    sr("s_cmp_ge_u32 s2, 1024")
    sr("s_cbranch_scc1 L1_end")
    sr("s_load_dwordx16 s[16:31], s[0:1], 0")
    sr("s_load_dwordx4 s[32:35], s[0:1], 64")
    sr("s_load_dwordx2 s[36:37], s[0:1], 96")
    sr("s_and_b32 s3, s2, 7")
    sr("s_lshr_b32 s4, s2, 3")
    sr("s_lshr_b32 s5, s3, 2")
    sr("s_and_b32 s6, s3, 3")
    sr("s_lshl_b32 s6, s6, 3")
    sr("s_and_b32 s7, s4, 7")
    sr(f"s_add_u32 s{S_H}, s6, s7")
    sr("s_lshr_b32 s7, s4, 3")
    P.append(valu(f"v_lshrrev_b32 v{T1}, 6, v0", [0], [T1]))
    P.append(valu(f"v_and_b32 v{LANE}, 63, v0", [0], [LANE]))
    P.append(valu(f"v_readfirstlane_b32 s{S_W}, v{T1}", [T1], [], swr=[f"s{S_W}"]))
    sr("s_waitcnt lgkmcnt(0)")
    sr("s_cmp_eq_u32 s5, 0")
    sr("s_cselect_b64 s[8:9], s[16:17], s[26:27]")
    sr("s_cselect_b64 s[10:11], s[18:19], s[28:29]")
    sr("s_cselect_b64 s[12:13], s[20:21], s[30:31]")
    sr("s_cselect_b64 s[14:15], s[22:23], s[32:33]")
    sr("s_mul_i32 s38, s7, 221184")
    sr(f"s_add_u32 s{S_X}, s8, s38"); sr(f"s_addc_u32 s{S_X+1}, s9, 0"); sr(f"s_and_b32 s{S_X+1}, s{S_X+1}, 0xffff")
    sr(f"s_mov_b32 s{S_X+2}, 221184"); sr(f"s_mov_b32 s{S_X+3}, 0x20000")
    sr(f"s_lshl_b32 s38, s{S_H}, 8")
    sr(f"s_add_u32 s{S_WQ}, s14, s38"); sr(f"s_addc_u32 s{S_WQ+1}, s15, 0"); sr(f"s_and_b32 s{S_WQ+1}, s{S_WQ+1}, 0xffff")
    sr(f"s_sub_u32 s{S_WQ+2}, {576*8192}, s38"); sr(f"s_mov_b32 s{S_WQ+3}, 0x20000")
    sr("s_lshl_b32 s38, s7, 5"); sr(f"s_add_u32 s38, s38, s{S_H}"); sr("s_lshl_b32 s38, s38, 17")
    sr(f"s_add_u32 s{S_K}, s10, s38"); sr(f"s_addc_u32 s{S_K+1}, s11, 0"); sr(f"s_and_b32 s{S_K+1}, s{S_K+1}, 0xffff")
    sr(f"s_mov_b32 s{S_K+2}, 131072"); sr(f"s_mov_b32 s{S_K+3}, 0x20000")
    sr(f"s_add_u32 s{S_V}, s12, s38"); sr(f"s_addc_u32 s{S_V+1}, s13, 0"); sr(f"s_and_b32 s{S_V+1}, s{S_V+1}, 0xffff")
    sr(f"s_mov_b32 s{S_V+2}, 131072"); sr(f"s_mov_b32 s{S_V+3}, 0x20000")
    sr("s_lshl_b32 s38, s5, 4"); sr("s_add_u32 s38, s38, s7"); sr("s_mul_i32 s38, s38, 1572864")
    sr(f"s_add_u32 s{S_O}, s36, s38"); sr(f"s_addc_u32 s{S_O+1}, s37, 0"); sr(f"s_and_b32 s{S_O+1}, s{S_O+1}, 0xffff")
    sr(f"s_mov_b32 s{S_O+2}, 1572864"); sr(f"s_mov_b32 s{S_O+3}, 0x20000")
    sr(f"s_lshl_b32 s{S_W1024}, s{S_W}, 10")
    sr(f"s_mov_b32 s{S_Q1}, 18432"); sr(f"s_mov_b32 s{S_Q2}, 36864")
    sr(f"s_mov_b32 s{S_OQ1}, 131072"); sr(f"s_mov_b32 s{S_OQ2}, 262144")
    sr(f"s_mov_b32 s{S_THR}, 0x{f32bits(2.0**40):x}")
    sc = f32bits(math.log2(math.e) / math.sqrt(128.0))
    sr(f"s_mov_b32 s{S_SC}, 0x{sc:x}"); sr(f"s_mov_b32 s{S_SC+1}, 0x{sc:x}")
    a, b, c, d, e = FR, FR + 1, FR + 2, FR + 3, FR + 4
    V = lambda t, rd, wr: P.append(valu(t, rd, wr))
    sr(f"s_lshl_b32 s38, s{S_W}, 2")
    V(f"v_lshrrev_b32 v{a}, 4, v{LANE}", [LANE], [a])
    V(f"v_add_u32 v{a}, s38, v{a}", [a], [a])
    V(f"v_and_b32 v{b}, 15, v{LANE}", [LANE], [b])
    V(f"v_xor_b32 v{c}, v{a}, v{b}", [a, b], [c])
    V(f"v_lshlrev_b32 v{c}, 4, v{c}", [c], [c])
    V(f"v_lshl_add_u32 v{VOK}, v{a}, 8, v{c}", [a, c], [VOK])
    V(f"v_and_b32 v{c}, 7, v{a}", [a], [c])
    V(f"v_lshlrev_b32 v{c}, 1, v{c}", [c], [c])
    V(f"v_xor_b32 v{c}, v{c}, v{b}", [c, b], [c])
    V(f"v_lshlrev_b32 v{c}, 4, v{c}", [c], [c])
    V(f"v_lshl_add_u32 v{VOV}, v{a}, 8, v{c}", [a, c], [VOV])
    V(f"v_and_b32 v{c}, 3, v{a}", [a], [c])
    V(f"v_lshrrev_b32 v{d}, 3, v{a}", [a], [d])
    V(f"v_lshl_add_u32 v{c}, v{d}, 2, v{c}", [d, c], [c])
    V(f"v_lshlrev_b32 v{c}, 1, v{c}", [c], [c])
    V(f"v_xor_b32 v{c}, v{c}, v{b}", [c, b], [c])
    V(f"v_lshlrev_b32 v{c}, 4, v{c}", [c], [c])
    V(f"v_lshl_add_u32 v{VOW}, v{a}, 13, v{c}", [a, c], [VOW])
    sr(f"s_mul_i32 s38, s{S_W}, 48")
    V(f"v_add_u32 v{c}, s38, v{b}", [b], [c])
    V(f"v_mul_u32_u24 v{c}, 1152, v{c}", [c], [c])
    V(f"v_lshrrev_b32 v{d}, 4, v{LANE}", [LANE], [d])
    V(f"v_lshl_add_u32 v{VOX}, v{d}, 4, v{c}", [d, c], [VOX])

    seqA = [('W', 2 * i) for i in range(9)] + [('K', i) for i in range(16)]
    seqB = [('W', 2 * i + 1) for i in range(9)] + [('V', i) for i in range(16)]
    tiles = Tiles(seqA, seqB)
    pre = set()
    for st in range(NSLOT):
        for t in (('W', 2 * st), ('W', 2 * st + 1)):
            for g in tiles.dma(t, cfg): P.extend(g)
            pre.add(t)
        if st < NXF // 2:
            for k in (2 * st, 2 * st + 1):
                for qt in range(3): P.append(xload(k, qt))
    V(f"v_lshrrev_b32 v{a}, 2, v{LANE}", [LANE], [a])
    V(f"v_and_b32 v{a}, 3, v{a}", [a], [a])
    V(f"v_lshl_add_u32 v{b}, v{d}, 3, v{a}", [d, a], [b])
    V(f"v_and_b32 v{c}, 1, v{d}", [d], [c])
    V(f"v_lshl_add_u32 v{c}, v{c}, 2, v{a}", [c, a], [c])
    V(f"v_lshlrev_b32 v{c}, 5, v{c}", [c], [c])
    V(f"v_lshl_add_u32 v{c}, v{b}, 8, v{c}", [b, c], [c])
    V(f"v_and_b32 v{e}, 3, v{LANE}", [LANE], [e])
    V(f"v_lshl_add_u32 v{WADA}, v{e}, 3, v{c}", [e, c], [WADA])
    for T in range(1, 8): V(f"v_xor_b32 v{WADA+T}, {T*32}, v{WADA}", [WADA], [WADA + T])
    for T in range(8): V(f"v_add_u32 v{WADB+T}, {RINGB}, v{WADA+T}", [WADA + T], [WADB + T])
    if cfg.prio: sr(f"s_setprio {cfg.prio}")

    sem = []; F = Frag()
    for k in range(18):
        if k % 2 == 0: sem.append(barrier(0))
        if k >= NXF:
            for qt in range(3): sem.append(xload(k, qt))
        for T in range(8):
            fr = F.next()
            sem.extend(wfrag(fr, tiles, k, T))
            for qt in range(3):
                sem.append(mfma16(O_(T, qt), fr, XFr(k, qt), None if k == 0 else O_(T, qt)))
    for t in range(4):
        for qt in range(3):
            a_ = O_(2 * t, qt); b_ = O_(2 * t + 1, qt); q = Q_(qt, t)
            for r in (a_, a_ + 2, b_, b_ + 2):
                sem.append(valu(f"v_pk_mul_f32 {R(r,2)}, {R(r,2)}, s[{S_SC}:{S_SC+1}]", [r, r + 1], [r, r + 1]))
            sem.append(valu(f"v_cvt_pk_bf16_f32 v{q}, v{a_}, v{a_+1}", [a_, a_ + 1], [q]))
            sem.append(valu(f"v_cvt_pk_bf16_f32 v{q+1}, v{a_+2}, v{a_+3}", [a_ + 2, a_ + 3], [q + 1]))
            sem.append(valu(f"v_cvt_pk_bf16_f32 v{q+2}, v{b_}, v{b_+1}", [b_, b_ + 1], [q + 2]))
            sem.append(valu(f"v_cvt_pk_bf16_f32 v{q+3}, v{b_+2}, v{b_+3}", [b_ + 2, b_ + 3], [q + 3]))
            for x in range(2): sem.append(perm(f"v_permlane32_swap_b32 v{q+x}, v{q+2+x}", [q + x, q + 2 + x]))
            for x in range(2): sem.append(perm(f"v_permlane16_swap_b32 v{q+x}, v{q+2+x}", [q + x, q + 2 + x]))
    att_addrs(sem)
    attention(sem, F, tiles, False)
    epilogue_norm(sem)
    sch = schedule(sem, cfg.valu_rate, cfg.valu_burst)
    P.extend(place_tiles(sch, tiles, cfg, pre))
    V(f"v_max3_f32 v{T0}, v{L_(0)}, v{L_(1)}, v{L_(2)}", [L_(0), L_(1), L_(2)], [T0])
    P.append(valu(f"v_cmp_nge_f32 vcc, s{S_THR}, v{L_(0)}", [L_(0)], [], swr=['vcc']))
    P.append(valu(f"v_cmp_nge_f32 s[72:73], s{S_THR}, v{L_(1)}", [L_(1)], [], swr=['s72']))
    P.append(valu(f"v_cmp_nge_f32 s[74:75], s{S_THR}, v{L_(2)}", [L_(2)], [], swr=['s74']))
    sr("s_nop 4")
    sr("s_or_b64 s[72:73], s[72:73], s[74:75]")
    sr("s_or_b64 s[72:73], s[72:73], vcc")
    sr("s_cmp_lg_u64 s[72:73], 0")
    sr("s_cselect_b32 s72, 1, 0")
    sr(f"s_lshl_b32 s73, s{S_W}, 2")
    V(f"v_mov_b32 v{T0}, s73", [], [T0])
    V(f"v_mov_b32 v{T1}, s72", [], [T1])
    fl = tiles.base(('K', 12))
    P.append(ds_write(f"ds_write_b32 v{T0}, v{T1} offset:{fl}", [T0, T1]))
    V(f"v_mov_b32 v{T0}, 0", [], [T0])
    P.append(waitall(vm=False))
    P.append(barrier())
    P.append(ds_read(f"ds_read_b128 {R(FR,4)}, v{T0} offset:{fl}", T0, rng(FR, 4)))
    V(f"v_or3_b32 v{FR}, v{FR}, v{FR+1}, v{FR+2}", [FR, FR + 1, FR + 2], [FR])
    V(f"v_or_b32 v{FR}, v{FR}, v{FR+3}", [FR, FR + 3], [FR])
    P.append(valu(f"v_readfirstlane_b32 s72, v{FR}", [FR], [], swr=['s72']))
    sr("s_nop 3")
    sr("s_cmp_lg_u32 s72, 0")
    sr("s_cbranch_scc1 L1_fallback")
    P.extend(stores(cfg))
    sr("s_endpgm")
    P.append(label("L1_fallback"))
    sr("s_nop 7")
    for qt in range(3): V(f"v_mov_b32 v{NM(qt)+1}, 0xff800000", [], [NM(qt) + 1])
    sr(f"s_mov_b32 s{S_CNT}, 0")
    P.append(label("L1_fb_loop"))
    P.append(waitall())
    P.append(barrier())
    for c in range(2):
        P.append(salu(f"s_add_u32 m0, s{S_W1024}, {c*4096}", swr=['m0']))
        P.append(salu(f"s_add_u32 s{S_TMP}, s{S_CNT}, {c*4096}"))
        P.append(dma(f"buffer_load_dwordx4 v{VOK}, s[{S_K}:{S_K+3}], s{S_TMP} offen lds", [VOK]))
    P.append(waitall())
    P.append(barrier())
    for kt in range(2):
        for t in range(4):
            fr = ACC + (kt * 4 + t) * 4
            P.append(ds_read(f"ds_read_b128 {R(fr,4)}, v{KAD+t} offset:{kt*4096}", KAD + t, rng(fr, 4)))
    for kt in range(2):
        for t in range(4):
            fr = ACC + (kt * 4 + t) * 4
            for qt in range(3):
                d = S_(XB, kt, qt)
                P.append(mfma16(d, fr, Q_(qt, t), d if t else None))
    for qt in range(3):
        m = NM(qt) + 1
        for kt in range(2):
            a_ = S_(XB, kt, qt)
            V(f"v_max3_f32 v{m}, v{m}, v{a_}, v{a_+1}", [m, a_, a_ + 1], [m])
            V(f"v_max3_f32 v{m}, v{m}, v{a_+2}, v{a_+3}", [m, a_ + 2, a_ + 3], [m])
    sr("s_nop 7")
    sr(f"s_add_u32 s{S_CNT}, s{S_CNT}, 8192")
    sr(f"s_cmp_lt_u32 s{S_CNT}, 131072")
    sr("s_cbranch_scc1 L1_fb_loop")
    for qt in range(3): xlane_max(P, NM(qt) + 1, NM(qt) + 2)
    for qt in range(3): set_negm(P, qt, NM(qt) + 1)
    P.append(waitall())
    P.append(barrier())
    tiles2 = Tiles([('K', i) for i in range(16)], [('V', i) for i in range(16)])
    pre2 = set()
    for st in range(NSLOT):
        for t in (('K', st), ('V', st)):
            for g in tiles2.dma(t, cfg): P.extend(g)
            pre2.add(t)
    sem = []; F = Frag()
    attention(sem, F, tiles2, True)
    epilogue_norm(sem)
    sch = schedule(sem, cfg.valu_rate, cfg.valu_burst)
    P.extend(place_tiles(sch, tiles2, cfg, pre2))
    P.extend(stores(cfg))
    P.append(label("L1_end"))
    sr("s_endpgm")
    P = insert_waits(P)
    P, nn = insert_nops(P)
    return P, nn
```

```python
from asmlib import *

class Cfg2:
    pass

AC = 256
def ACC_(nu, qt): return AC + (nu * 6 + qt) * 4
BF = 32; NBS = 3
def B_(k, qt): return BF + (k % NBS) * 24 + qt * 4
FR = 104; NFR = 6
VOD = 16
AAD = 25; VOB = 26; LANE = 27
T = 4
NSL = 4; SL = 9216; WREG = NSL * SL
S_O, S_WO, S_OUT = 40, 44, 48
S_W = 52; S_WB = 53; S_TMP = 54; S_QO = 56
S_T2 = 55

def dma_tile(k):
    out = []
    for j in range(9):
        g = [salu(f"s_add_u32 m0, s{S_WB}, {(k % NSL) * SL + j * 1024}", swr=['m0'])]
        if j == 0: g.append(salu(f"s_mov_b32 s{S_TMP}, {k * 32 * 1152}"))
        g.append(dma(f"buffer_load_dwordx4 v{VOD+j}, s[{S_WO}:{S_WO+3}], s{S_TMP} offen lds", [VOD + j], tag=('W', k)))
        out.append(g)
    return out

def bload(k, qt):
    return vload(f"buffer_load_dwordx4 {R(B_(k,qt),4)}, v{VOB}, s[{S_O}:{S_O+3}], s{S_QO+qt} offen offset:{(k%4)*1024}", [VOB], rng(B_(k, qt), 4))

def gen(cfg):
    P = []
    def sr(t): P.append(raw(t))
    V = lambda t, rd, wr: P.append(valu(t, rd, wr))
    sr("s_cmp_ge_u32 s2, 256")
    sr("s_cbranch_scc1 L2_end")
    sr("s_load_dwordx2 s[16:17], s[0:1], 32")
    sr("s_load_dwordx4 s[20:23], s[0:1], 72")
    sr("s_load_dwordx2 s[24:25], s[0:1], 96")
    sr("s_and_b32 s3, s2, 7")
    sr("s_lshr_b32 s4, s2, 3")
    sr("s_lshl_b32 s5, s3, 3")
    sr("s_lshr_b32 s6, s4, 2")
    sr("s_add_u32 s5, s5, s6")
    sr("s_and_b32 s6, s4, 3")
    sr("s_lshr_b32 s7, s5, 5")
    V(f"v_lshrrev_b32 v{T}, 6, v0", [0], [T])
    V(f"v_and_b32 v{LANE}, 63, v0", [0], [LANE])
    P.append(valu(f"v_readfirstlane_b32 s{S_W}, v{T}", [T], [], swr=[f"s{S_W}"]))
    sr("s_waitcnt lgkmcnt(0)")
    sr("s_cmp_eq_u32 s7, 0")
    sr("s_cselect_b64 s[8:9], s[16:17], s[20:21]")
    sr("s_mul_i32 s10, s5, 786432")
    sr(f"s_add_u32 s{S_O}, s24, s10"); sr(f"s_addc_u32 s{S_O+1}, s25, 0"); sr(f"s_and_b32 s{S_O+1}, s{S_O+1}, 0xffff")
    sr(f"s_mov_b32 s{S_O+2}, 786432"); sr(f"s_mov_b32 s{S_O+3}, 0x20000")
    sr("s_mul_i32 s10, s6, 288")
    sr(f"s_mul_i32 s11, s{S_W}, {1024*1152}")
    sr("s_add_u32 s10, s10, s11")
    sr(f"s_add_u32 s{S_WO}, s8, s10"); sr(f"s_addc_u32 s{S_WO+1}, s9, 0"); sr(f"s_and_b32 s{S_WO+1}, s{S_WO+1}, 0xffff")
    sr(f"s_sub_u32 s{S_WO+2}, {4096*1152}, s10"); sr(f"s_mov_b32 s{S_WO+3}, 0x20000")
    sr("s_and_b32 s10, s5, 31")
    sr(f"s_mul_i32 s10, s10, {96*2304}")
    sr("s_mul_i32 s11, s7, 1152")
    sr("s_add_u32 s10, s10, s11")
    sr("s_mul_i32 s11, s6, 288")
    sr("s_add_u32 s10, s10, s11")
    sr(f"s_add_u32 s{S_OUT}, s22, s10"); sr(f"s_addc_u32 s{S_OUT+1}, s23, 0"); sr(f"s_and_b32 s{S_OUT+1}, s{S_OUT+1}, 0xffff")
    sr(f"s_mov_b32 s{S_OUT+2}, {95*2304+288}"); sr(f"s_mov_b32 s{S_OUT+3}, 0x20000")
    sr(f"s_mul_i32 s{S_WB}, s{S_W}, {WREG}")
    for qt in range(6): sr(f"s_mov_b32 s{S_QO+qt}, {qt*131072}")
    sr("s_movk_i32 s10, 3641")
    for j in range(9):
        V(f"v_add_u32 v{T}, {64*j}, v{LANE}", [LANE], [T])
        V(f"v_mul_u32_u24 v{T+1}, s10, v{T}", [T], [T + 1])
        V(f"v_lshrrev_b32 v{T+1}, 16, v{T+1}", [T + 1], [T + 1])
        V(f"v_mul_u32_u24 v{T+2}, 18, v{T+1}", [T + 1], [T + 2])
        V(f"v_sub_u32 v{T+2}, v{T}, v{T+2}", [T, T + 2], [T + 2])
        V(f"v_mul_u32_u24 v{T+1}, 1152, v{T+1}", [T + 1], [T + 1])
        V(f"v_lshl_add_u32 v{VOD+j}, v{T+2}, 4, v{T+1}", [T + 2, T + 1], [VOD + j])
    sr(f"s_lshl_b32 s10, s{S_W}, 15")
    V(f"v_lshlrev_b32 v{VOB}, 4, v{LANE}", [LANE], [VOB])
    V(f"v_add_u32 v{VOB}, s10, v{VOB}", [VOB], [VOB])
    for k in range(NSL - 1):
        for g in dma_tile(k): P.extend(g)
        if k < NBS - 1:
            for qt in range(6): P.append(bload(k, qt))
    V(f"v_lshrrev_b32 v{T}, 2, v{LANE}", [LANE], [T])
    V(f"v_mul_u32_u24 v{T}, 288, v{T}", [T], [T])
    V(f"v_and_b32 v{T+1}, 3, v{LANE}", [LANE], [T + 1])
    V(f"v_lshl_add_u32 v{T}, v{T+1}, 3, v{T}", [T + 1, T], [T])
    V(f"v_add_u32 v{AAD}, s{S_WB}, v{T}", [T], [AAD])
    sem = []; nf = 0
    for k in range(32):
        sem.append(I('', 'barrier', tag=k))
        if k >= NBS - 1 or True:
            kk = k
            if kk >= NBS - 1:
                if kk % 4 == 0: sem.append(valu(f"v_add_u32 v{VOB}, 4096, v{VOB}", [VOB], [VOB]))
                for qt in range(6): sem.append(bload(kk, qt))
        for nu in range(9):
            fr = FR + (nf % NFR) * 4; nf += 1
            for h in range(2):
                sem.append(ds_read(f"ds_read_b64_tr_b16 {R(fr+2*h,2)}, v{AAD} offset:{(k%NSL)*SL + h*4608 + nu*32}", AAD, rng(fr + 2 * h, 2), tag=('W', k)))
            for qt in range(6):
                sem.append(mfma16(ACC_(nu, qt), fr, B_(k, qt), None if k == 0 else ACC_(nu, qt)))
    sch = schedule(sem)
    out = []; seen = set(); lastpos = {}
    for i, ins in enumerate(sch):
        if ins.kind == 'dsr': lastpos[ins.tag] = i
    pend = []; cnt = 0; nxt = NSL - 1
    for i, ins in enumerate(sch):
        if ins.kind == 'dsr' and ins.tag not in seen:
            seen.add(ins.tag); out.append(waittag(vm=[ins.tag]))
        out.append(ins)
        if nxt < 32 and not pend and (nxt - NSL < 0 or i >= lastpos[('W', nxt - NSL)]):
            if nxt - NSL >= 0: pend.append([waittag(lg=[('W', nxt - NSL)])])
            pend.extend(dma_tile(nxt)); nxt += 1; cnt = 0
        if ins.kind == 'mfma' and pend:
            cnt += 1
            if cnt % 4 == 0: out.extend(pend.pop(0))
    assert not pend and nxt == 32
    P.extend(out)
    CP = 27 * 1024
    V(f"v_lshlrev_b32 v{T}, 4, v{LANE}", [LANE], [T])
    sr(f"s_mul_i32 s10, s{S_W}, {CP}")
    V(f"v_add_u32 v{T+1}, s10, v{T}", [T], [T + 1])
    sr(f"s_lshl_b32 s10, s{S_W}, 10")
    V(f"v_add_u32 v{T+2}, s10, v{T}", [T], [T + 2])
    V(f"v_add_u32 v{T+3}, {2*CP}, v{T+2}", [T + 2], [T + 3])
    V(f"v_and_b32 v{T+4}, 15, v{LANE}", [LANE], [T + 4])
    V(f"v_mul_u32_u24 v{T+4}, 2304, v{T+4}", [T + 4], [T + 4])
    V(f"v_lshrrev_b32 v{T+5}, 4, v{LANE}", [LANE], [T + 5])
    V(f"v_lshl_add_u32 v{T+4}, v{T+5}, 3, v{T+4}", [T + 5, T + 4], [T + 4])
    for rho in range(2):
        P.append(waitall(vm=False))
        P.append(barrier())
        for q3 in range(3):
            for nu in range(9):
                a = ACC_(nu, rho * 3 + q3)
                P.append(ds_write(f"ds_write_b128 v{T+1}, {R(a,4)} offset:{(q3*9+nu)*1024}", rng(a, 4) + [T + 1]))
        P.append(waitall(vm=False))
        P.append(barrier())
        for i in range(7):
            b = BF + (i % 4) * 16
            for c in range(4):
                P.append(ds_read(f"ds_read_b128 {R(b+4*c,4)}, v{T+2+c//2} offset:{i*4096 + (c%2)*CP}", T + 2 + c // 2, rng(b + 4 * c, 4)))
            if i % 4 == 3 or i == 6:
                for ii in range(i - (i % 4), i + 1):
                    b = BF + (ii % 4) * 16
                    for e in range(0, 4, 2):
                        V(f"v_pk_add_f32 {R(b+e,2)}, {R(b+e,2)}, {R(b+4+e,2)}", [b + e, b + e + 1, b + 4 + e, b + 5 + e], [b + e, b + e + 1])
                        V(f"v_pk_add_f32 {R(b+8+e,2)}, {R(b+8+e,2)}, {R(b+12+e,2)}", [b + 8 + e, b + 9 + e, b + 12 + e, b + 13 + e], [b + 8 + e, b + 9 + e])
                        V(f"v_pk_add_f32 {R(b+e,2)}, {R(b+e,2)}, {R(b+8+e,2)}", [b + e, b + e + 1, b + 8 + e, b + 9 + e], [b + e, b + e + 1])
                    V(f"v_cvt_pk_bf16_f32 v{b}, v{b}, v{b+1}", [b, b + 1], [b])
                    V(f"v_cvt_pk_bf16_f32 v{b+1}, v{b+2}, v{b+3}", [b + 2, b + 3], [b + 1])
                    sr(f"s_add_u32 s10, s{S_W}, {4*ii}")
                    sr("s_mul_i32 s11, s10, 57")
                    sr("s_lshr_b32 s11, s11, 9")
                    sr("s_mul_i32 s12, s11, 9")
                    sr("s_sub_u32 s12, s10, s12")
                    sr(f"s_mul_i32 s11, s11, {16*2304}")
                    sr("s_lshl_b32 s12, s12, 5")
                    sr("s_add_u32 s11, s11, s12")
                    sr(f"s_add_u32 s11, s11, {rho*48*2304}")
                    sr("s_cmp_ge_u32 s10, 27")
                    sr("s_cselect_b32 s11, 0x40000000, s11")
                    P.append(vstore(f"buffer_store_dwordx2 {R(b,2)}, v{T+4}, s[{S_OUT}:{S_OUT+3}], s11 offen", [b, b + 1, T + 4], wide=False))
    P.append(label("L2_end"))
    sr("s_endpgm")
    P = insert_waits(P)
    P, nn = insert_nops(P)
    return P, nn
```

```python
import sys, k1, k2
from asmlib import render
NAME = "concat_heads__mha_block_cached__mha_block_cached__near_ridge"
def build(c1, c2, path):
    ref = open(f"cdna_kernels/{NAME}.s.ref").read()
    head = []
    for line in ref.splitlines():
        if line.startswith(';') and '@launch' not in line and 'Override launch' not in line and 'grid=ceil' not in line: head.append(line)
        if not line.startswith(';'): break
    P1, n1 = k1.gen(c1)
    P2, n2 = k2.gen(c2)
    s = "\n".join(head) + "\n"
    s += "; @launch kernel=attn_kernel grid=(1024,1,1) block=(256,1,1) lds=81920\n"
    s += "; @launch kernel=oproj_kernel grid=(256,1,1) block=(256,1,1) lds=147456\n"
    s += '.amdgcn_target "amdgcn-amd-amdhsa--gfx950"\n.text\n'
    for nm, P in (("attn_kernel", P1), ("oproj_kernel", P2)):
        s += f".globl {nm}\n.p2align 8\n.type {nm},@function\n{nm}:\n" + render(P)
    s += '.section .rodata,"a"\n'
    for nm, vg, acc in (("attn_kernel", 256, 256), ("oproj_kernel", 128 + 216, 128)):
        s += f""".p2align 6
.amdhsa_kernel {nm}
  .amdhsa_next_free_vgpr {vg}
  .amdhsa_next_free_sgpr 96
  .amdhsa_accum_offset {acc}
  .amdhsa_group_segment_fixed_size 0
  .amdhsa_kernarg_size 104
  .amdhsa_user_sgpr_count 2
  .amdhsa_user_sgpr_kernarg_segment_ptr 1
  .amdhsa_system_sgpr_workgroup_id_x 1
.end_amdhsa_kernel
"""
    open(path, "w").write(s)
    print("instrs", len(P1), len(P2), "nops", n1, n2, "bytes", len(s))
if __name__ == "__main__":
    build(k1.Cfg(), k2.Cfg2(), f"cdna_kernels/{NAME}.s")
```

```python
from asmlib import *
import math, struct, copy

def f32bits(x): return struct.unpack('<I', struct.pack('<f', x))[0]

class Cfg:
    valu_rate = 1.3
    valu_burst = 2
    kv_flags = " nt"
    o_flags = ""
    prio = 0
    stamps = False
    warm = True
    dma_gap = 2
    xpos0 = 13
    nitems = 2
    kvdepth = 99
    drop = ''
    warm_wo = True
    pa = None
    pq = 0
    pq0 = None

ACC = 160
def O_(s, qt): return ACC + (s * 3 + qt) * 4
QB = 112
def Q_(qt, t): return QB + (qt * 4 + t) * 4
XB, YB = 64, 88
def S_(buf, kt, qt): return buf + (kt * 3 + qt) * 4
NEGM = 52
def NM(qt): return NEGM + qt * 4
LB = 40
def L_(qt): return LB + qt * 4
ONES = 36
FR = 16; NFR = 5
KAD = 4
VAD = 8
VOW, VOX, VOV, VOK = 0, 1, 2, 3
VOX2 = 3
VOKT = 52
WADA = 4
WADB = 40
XAD = 12
XF = 64; NXF = 8
def XFr(k, qt): return XF + (k % NXF) * 12 + qt * 4
SLOT = 8192; RINGB = 40960
NXC = 4

S_X, S_WQ, S_K, S_V, S_O = 40, 44, 48, 52, 56
S_W = 60; S_W1024 = 61
S_OQ1, S_OQ2 = 64, 65
S_TMP = 66; S_THR = 67; S_SC = 68; S_CNT = 70; S_H = 71
S_XB = 39
S_IT = 62
S_J7 = 63

class Frag:
    def __init__(self): self.n = 0
    def next(self):
        r = FR + (self.n % NFR) * 4; self.n += 1; return r

def lane_id(p, r):
    p.append(valu(f"v_mbcnt_lo_u32_b32 v{r}, -1, 0", [], [r]))
    p.append(valu(f"v_mbcnt_hi_u32_b32 v{r}, -1, v{r}", [r], [r]))

def tile_dma(tile, loc, cfg):
    kind, it, i = tile
    out = []
    for c in range(2):
        if kind == 'X':
            st, qt = i // 3, i % 3
            g = [salu(f"s_add_u32 m0, s{S_XB}, {loc + (i % NXC) * 2048 + c * 1024}", swr=['m0']),
                 salu(f"s_mov_b32 s{S_TMP}, {(qt * 16 + c * 8) * 1152 + st * 128}"),
                 dma(f"buffer_load_dwordx4 v{VOX2 if c else VOX}, s[{S_X}:{S_X+3}], s{S_TMP} offen lds", [VOX2 if c else VOX], tag=tile)]
            out.append(g); continue
        if kind == 'W': goff = (i * 32 + c * 16) * 8192; srd = S_WQ; vo = VOW; fl = ""
        elif kind == 'K': goff = i * 8192 + c * 4096; srd = S_K; vo = VOK; fl = cfg.kv_flags
        else: goff = i * 8192 + c * 4096; srd = S_V; vo = VOV; fl = cfg.kv_flags
        out.append([salu(f"s_add_u32 m0, s{S_W1024}, {loc + c * 4096}", swr=['m0']),
                    salu(f"s_mov_b32 s{S_TMP}, {goff}"),
                    dma(f"buffer_load_dwordx4 v{vo}, s[{srd}:{srd+3}], s{S_TMP} offen{fl} lds", [vo], tag=tile)])
    return out

def lds_read(op, dst, n, tile, sel, inner):
    kind = tile[0]
    ad = {'K': [KAD + sel], 'V': [VAD + sel], 'W': [WADA + sel, WADB + sel], 'X': [XAD + sel]}[kind]
    ins = I('?', 'dsr', ad, rng(dst, n), tag=tile, extra=(op, dst, n, sel, inner))
    return ins

def resolve(ins, loc):
    op, dst, n, sel, inner = ins.extra
    kind = ins.tag[0]
    if kind == 'K': ad, off = KAD + sel, loc
    elif kind == 'V': ad, off = VAD + sel, loc - RINGB
    elif kind == 'W': ad, off = (WADA + sel, loc) if loc < RINGB else (WADB + sel, loc - RINGB)
    else: ad, off = XAD + sel, loc + (ins.tag[2] % NXC) * 2048
    ins.text = f"{op} {R(dst, n)}, v{ad} offset:{off + inner}"

def place_tiles(prog, cfg, xzone, earliest=None):
    earliest = earliest or {}
    nb = -1; first = {}; last = {}; lastpos = {}; firstpos = {}; barpos = []; mark = {}
    for i, ins in enumerate(prog):
        if ins.kind == 'barrier' and ins.tag is not None: nb += 1; barpos.append(i)
        if ins.kind == 'marker': mark[ins.tag] = i
        if ins.kind in ('dsr', 'dsw') and ins.tag is not None:
            t = ins.tag
            assert nb >= 0
            first.setdefault(t, nb); last[t] = nb; lastpos[t] = i; firstpos.setdefault(t, i)
    nbar = nb + 1
    dl = {t: (firstpos[t] if t[0] == 'X' else barpos[first[t]]) for t in first}
    freeat = {s: -1 for s in range(10)}
    loc = {}; issue_at = {}
    items = sorted({t[1] for t in first})
    units = [t for t in first if t[0] != 'X'] + [('X', it, 0) for it in items if ('X', it, 0) in first]
    for t in sorted(units, key=lambda t: dl[t]):
        kind, it, i = t
        if kind == 'X':
            z = xzone[it]; sl = list(range(z, z + 4))
            b = max(freeat[s] for s in sl)
            xs = [u for u in first if u[0] == 'X' and u[1] == it]
            for u in xs: loc[u] = z * SLOT
            for n in range(NXC): issue_at[('X', it, n)] = b
            for s in sl: freeat[s] = max(last[u] for u in xs) + 1
            continue
        if kind == 'F':
            s = min(range(5, 10), key=lambda s: (freeat[s], s))
            assert freeat[s] <= first[t]
            loc[t] = s * SLOT; freeat[s] = last[t] + 1
            continue
        if kind == 'K': allowed = range(5)
        elif kind == 'V': allowed = range(5, 10)
        else: allowed = [4 if xzone[it] == 0 else 0] + list(range(5, 10))
        s = min(allowed, key=lambda s: (freeat[s], s))
        assert freeat[s] < first[t] or (freeat[s] == -1), (t, s, freeat[s], first[t])
        loc[t] = s * SLOT; issue_at[t] = freeat[s]; freeat[s] = last[t] + 1
        if kind in 'KV': issue_at[t] = max(issue_at[t], first[t] - cfg.kvdepth)
    for ins in prog:
        if ins.kind == 'dsr' and ins.tag is not None and ins.tag[0] != 'F': resolve(ins, loc[ins.tag])
    need = [[] for _ in range(nbar)]; free = [[] for _ in range(nbar + 1)]
    for t in first:
        if t[0] not in 'XF': need[first[t]].append(t)
        free[last[t] + 1].append(t)
    issue = [[] for _ in range(nbar)]; pre = []
    for t in sorted(issue_at, key=lambda t: dl[t]):
        if issue_at[t] < 0:
            if first[t] == 0: pre.extend(tile_dma(t, loc[t], cfg))
            else: issue[0].append(t)
        else: issue[issue_at[t]].append(t)
    out = []; nb = -1; pend = []; cnt = 0; seenx = set(); held = []
    nxt = {it: NXC for it in items}
    def push(gs):
        pend.extend(gs); pend.sort(key=lambda g: dl[g[-1].tag])
    def allowed_now(t, i):
        m = earliest.get((t[0], t[1]))
        return m is None or i >= mark[m]
    log = []
    for i, ins in enumerate(prog):
        for t in [t for t in held if allowed_now(t, i)]:
            held.remove(t); push(tile_dma(t, loc[t], cfg))
        while pend and dl[pend[0][-1].tag] <= i: out.extend(pend.pop(0))
        if ins.kind == 'marker' and ins.tag.startswith('flush'):
            while pend: out.extend(pend.pop(0))
        if ins.kind == 'barrier' and ins.tag is not None:
            nb += 1
            out.append(waittag(vm=need[nb], lg=free[nb]))
            out.append(ins)
            for t in issue[nb]:
                if allowed_now(t, i): push(tile_dma(t, loc[t], cfg))
                else: held.append(t)
            continue
        if ins.kind == 'dsr' and ins.tag is not None and ins.tag[0] == 'X' and ins.tag not in seenx:
            seenx.add(ins.tag)
            out.append(waittag(vm=[ins.tag]))
        out.append(ins)
        if ins.kind == 'mfma':
            for it in items:
                while ('X', it, nxt[it]) in first and i >= lastpos[('X', it, nxt[it] - NXC)] + 6:
                    t = ('X', it, nxt[it])
                    g = tile_dma(t, loc[t], cfg)
                    g[0] = [waittag(lg=[('X', it, nxt[it] - NXC)])] + g[0]
                    push(g); nxt[it] += 1
            if pend:
                cnt += 1
                if cnt % cfg.dma_gap == 0: out.extend(pend.pop(0))
    assert not pend and not held
    seen = set()
    for ins in out:
        if ins.kind == 'marker': seen.add(ins.tag)
        if ins.kind == 'dma' and ins.tag:
            k_, it_, _ = ins.tag
            assert not (k_ == 'K' and f'flushk{it_}' in seen), ins.tag
            assert not (k_ == 'X' and f'flushx{it_}' in seen), ins.tag
    return pre, out, loc

def qk(sem, F, it, j, buf, usem):
    for kt in range(2):
        for t in range(4):
            fr = F.next()
            sem.append(lds_read("ds_read_b128", fr, 4, ('K', it, j), t, kt * 4096))
            for qt in range(3):
                d = S_(buf, kt, qt)
                c = d if t > 0 else (NM(qt) if usem else None)
                sem.append(mfma16(d, fr, Q_(qt, t), c))

def softmax(sem, buf, addm):
    for qt in range(3):
        for kt in range(2):
            for p in range(2):
                for e in range(2):
                    r = S_(buf, kt, qt) + p * 2 + e
                    if addm: sem.append(valu(f"v_add_f32 v{r}, v{NM(qt)}, v{r}", [r, NM(qt)], [r]))
                    sem.append(trans(f"v_exp_f32 v{r}, v{r}", [r], [r]))
                r = S_(buf, kt, qt) + p * 2
                d = S_(buf, 0, qt) + kt * 2 + p
                sem.append(valu(f"v_cvt_pk_bf16_f32 v{d}, v{r}, v{r+1}", [r, r + 1], [d]))

def pv(sem, F, it, j, buf):
    first = (j == 0)
    for qt in range(3):
        sem.append(mfma16(L_(qt), ONES, S_(buf, 0, qt), None if first else L_(qt)))
    for s in range(8):
        fr = F.next()
        for h in range(2): sem.append(lds_read("ds_read_b64_tr_b16", fr + 2 * h, 2, ('V', it, j), s, h * 4096))
        for qt in range(3):
            sem.append(mfma16(O_(s, qt), fr, S_(buf, 0, qt), None if first else O_(s, qt)))

def xlane_max(sem, r, tmp):
    sem.append(valu(f"v_mov_b32 v{tmp}, v{r}", [r], [tmp]))
    sem.append(perm(f"v_permlane32_swap_b32 v{r}, v{tmp}", [r, tmp]))
    sem.append(valu(f"v_max_f32 v{r}, v{r}, v{tmp}", [r, tmp], [r]))
    sem.append(valu(f"v_mov_b32 v{tmp}, v{r}", [r], [tmp]))
    sem.append(perm(f"v_permlane16_swap_b32 v{r}, v{tmp}", [r, tmp]))
    sem.append(valu(f"v_max_f32 v{r}, v{r}, v{tmp}", [r, tmp], [r]))

def first_max(sem, buf):
    for qt in range(3):
        m = NM(qt) + 1; a = S_(buf, 0, qt); b = S_(buf, 1, qt)
        sem.append(valu(f"v_max3_f32 v{m}, v{a}, v{a+1}, v{a+2}", [a, a + 1, a + 2], [m]))
        sem.append(valu(f"v_max3_f32 v{m}, v{m}, v{a+3}, v{b}", [m, a + 3, b], [m]))
        sem.append(valu(f"v_max3_f32 v{m}, v{m}, v{b+1}, v{b+2}", [m, b + 1, b + 2], [m]))
        sem.append(valu(f"v_max_f32 v{m}, v{m}, v{b+3}", [m, b + 3], [m]))
    for qt in range(3): xlane_max(sem, NM(qt) + 1, NM(qt) + 2)
    for qt in range(3): set_negm(sem, qt, NM(qt) + 1)

def set_negm(sem, qt, src):
    n = NM(qt)
    sem.append(valu(f"v_sub_f32 v{n}, 0, v{src}", [src], [n]))
    for e in range(1, 4): sem.append(valu(f"v_mov_b32 v{n+e}, v{n}", [n], [n + e]))

def stamp(i): return I(f"s_memtime s[{76+2*i}:{77+2*i}]", 'stamp')

def attention(sem, F, it, preset, hook=None):
    bufs = [XB, YB]
    sem.append(barrier(0))
    if hook: hook(sem, -1)
    qk(sem, F, it, 0, bufs[0], preset)
    qk(sem, F, it, 1, bufs[1], preset)
    if not preset: first_max(sem, bufs[0])
    for j in range(16):
        softmax(sem, bufs[j % 2], (not preset) and j < 2)
        if j < 15: sem.append(barrier(0))
        if hook: hook(sem, j)
        pv(sem, F, it, j, bufs[j % 2])
        if j + 2 < 16: qk(sem, F, it, j + 2, bufs[j % 2], True)

def epilogue_norm(sem):
    for qt in range(3):
        l = L_(qt)
        sem.append(trans(f"v_rcp_f32 v{l+2}, v{l}", [l], [l + 2]))
        sem.append(valu(f"v_mov_b32 v{l+3}, v{l+2}", [l + 2], [l + 3]))
    for t in range(4):
        for qt in range(3):
            l = L_(qt)
            a = O_(2 * t, qt); b = O_(2 * t + 1, qt)
            for r in (a, a + 2, b, b + 2):
                sem.append(valu(f"v_pk_mul_f32 {R(r,2)}, {R(r,2)}, {R(l+2,2)}", [r, r + 1, l + 2, l + 3], [r, r + 1]))
            sem.append(valu(f"v_cvt_pk_bf16_f32 v{a}, v{a}, v{a+1}", [a, a + 1], [a]))
            sem.append(valu(f"v_cvt_pk_bf16_f32 v{a+1}, v{a+2}, v{a+3}", [a + 2, a + 3], [a + 1]))
            sem.append(valu(f"v_cvt_pk_bf16_f32 v{a+2}, v{b}, v{b+1}", [b, b + 1], [a + 2]))
            sem.append(valu(f"v_cvt_pk_bf16_f32 v{a+3}, v{b+2}, v{b+3}", [b + 2, b + 3], [a + 3]))

def stores(cfg):
    p = []; T = FR + 4
    lane_id(p, T)
    p.append(salu(f"s_mul_i32 s{S_TMP}, s{S_W}, {3*128*1024}"))
    p.append(salu(f"s_lshl_b32 s{S_CNT}, s{S_H}, 12"))
    p.append(salu(f"s_add_u32 s{S_TMP}, s{S_TMP}, s{S_CNT}"))
    p.append(valu(f"v_lshlrev_b32 v{T}, 4, v{T}", [T], [T]))
    p.append(valu(f"v_add_u32 v{T}, s{S_TMP}, v{T}", [T], [T]))
    for qt in range(3):
        so = ['0', f"s{S_OQ1}", f"s{S_OQ2}"][qt]
        for t in range(4):
            a = O_(2 * t, qt)
            p.append(vstore(f"buffer_store_dwordx4 {R(a,4)}, v{T}, s[{S_O}:{S_O+3}], {so} offen offset:{t*1024}{cfg.o_flags}", rng(a, 4) + [T]))
    return p

def att_addrs(p, tmp):
    a, b, c, d = tmp, tmp + 1, tmp + 2, tmp + 3
    V = lambda t, rd, wr: p.append(valu(t, rd, wr))
    lane_id(p, a)
    V(f"v_and_b32 v{b}, 15, v{a}", [a], [b])
    V(f"v_lshrrev_b32 v{c}, 4, v{a}", [a], [c])
    V(f"v_xor_b32 v{d}, v{b}, v{c}", [b, c], [d])
    V(f"v_lshlrev_b32 v{d}, 4, v{d}", [d], [d])
    V(f"v_lshl_add_u32 v{KAD}, v{b}, 8, v{d}", [b, d], [KAD])
    for t in range(1, 4): V(f"v_xor_b32 v{KAD+t}, {t*64}, v{KAD}", [KAD], [KAD + t])
    V(f"v_lshrrev_b32 v{b}, 2, v{a}", [a], [b])
    V(f"v_and_b32 v{c}, 3, v{a}", [a], [c])
    V(f"v_lshlrev_b32 v{c}, 3, v{c}", [c], [c])
    V(f"v_lshl_add_u32 v{c}, v{b}, 8, v{c}", [b, c], [c])
    V(f"v_and_b32 v{d}, 7, v{b}", [b], [d])
    V(f"v_lshl_add_u32 v{c}, v{d}, 5, v{c}", [d, c], [c])
    V(f"v_add_u32 v{VAD}, {RINGB}, v{c}", [c], [VAD])
    for s in range(1, 8): V(f"v_xor_b32 v{VAD+s}, {s*32}, v{VAD}", [VAD], [VAD + s])
    for e in range(4): V(f"v_mov_b32 v{ONES+e}, 0x3f803f80", [], [ONES + e])

def qp_addrs(p, tmp):
    a, b, c, d, e = range(tmp, tmp + 5)
    V = lambda t, rd, wr: p.append(valu(t, rd, wr))
    lane_id(p, e)
    V(f"v_and_b32 v{b}, 15, v{e}", [e], [b])
    V(f"v_lshrrev_b32 v{d}, 4, v{e}", [e], [d])
    V(f"v_lshrrev_b32 v{c}, 1, v{b}", [b], [c])
    V(f"v_xor_b32 v{c}, v{c}, v{d}", [c, d], [c])
    V(f"v_lshlrev_b32 v{c}, 4, v{c}", [c], [c])
    V(f"v_lshl_add_u32 v{c}, v{b}, 7, v{c}", [b, c], [c])
    V(f"v_add_u32 v{XAD}, s{S_XB}, v{c}", [c], [XAD])
    V(f"v_xor_b32 v{XAD+1}, 64, v{XAD}", [XAD], [XAD + 1])
    V(f"v_lshrrev_b32 v{a}, 2, v{e}", [e], [a])
    V(f"v_and_b32 v{a}, 3, v{a}", [a], [a])
    V(f"v_lshl_add_u32 v{b}, v{d}, 3, v{a}", [d, a], [b])
    V(f"v_and_b32 v{c}, 1, v{d}", [d], [c])
    V(f"v_lshl_add_u32 v{c}, v{c}, 2, v{a}", [c, a], [c])
    V(f"v_lshlrev_b32 v{c}, 5, v{c}", [c], [c])
    V(f"v_lshl_add_u32 v{c}, v{b}, 8, v{c}", [b, c], [c])
    V(f"v_and_b32 v{e}, 3, v{e}", [e], [e])
    V(f"v_lshl_add_u32 v{WADA}, v{e}, 3, v{c}", [e, c], [WADA])
    for T in range(1, 8): V(f"v_xor_b32 v{WADA+T}, {T*32}, v{WADA}", [WADA], [WADA + T])
    for T in range(8): V(f"v_add_u32 v{WADB+T}, {RINGB}, v{WADA+T}", [WADA + T], [WADB + T])

def vok_calc(p, tmp, fixed=True):
    a, b = tmp, tmp + 1
    L = []
    lane_id(L, b)
    L.append(valu(f"v_lshrrev_b32 v{a}, 4, v{b}", [b], [a]))
    L.append(valu(f"v_lshl_add_u32 v{a}, s{S_W}, 2, v{a}", [a], [a]))
    L.append(valu(f"v_and_b32 v{b}, 15, v{b}", [b], [b]))
    L.append(valu(f"v_xor_b32 v{b}, v{a}, v{b}", [a, b], [b]))
    L.append(valu(f"v_lshlrev_b32 v{b}, 4, v{b}", [b], [b]))
    L.append(valu(f"v_lshl_add_u32 v{VOK}, v{a}, 8, v{b}", [a, b], [VOK]))
    p.extend(L)

def warm_x(p, tmp, dst, cfg):
    w0, w2 = tmp, tmp + 1
    lane_id(p, w2)
    p.append(salu(f"s_lshl_b32 s{S_CNT}, s{S_J7}, 2")); p.append(salu(f"s_add_u32 s{S_CNT}, s{S_CNT}, s{S_W}")); p.append(salu(f"s_mul_i32 s{S_CNT}, s{S_CNT}, 54"))
    p.append(valu(f"v_min_u32 v{w2}, 53, v{w2}", [w2], [w2]))
    p.append(valu(f"v_add_u32 v{w0}, s{S_CNT}, v{w2}", [w2], [w0]))
    p.append(valu(f"v_lshlrev_b32 v{w0}, 7, v{w0}", [w0], [w0]))
    p.append(vload(f"buffer_load_dword v{dst}, v{w0}, s[{S_X}:{S_X+3}], 0 offen", [w0], [dst]))

def dump_stamps(P, n):
    P.append(raw("s_waitcnt lgkmcnt(0)"))
    P.append(raw("s_load_dwordx2 s[36:37], s[0:1], 96"))
    P.append(raw("s_lshl_b32 s38, s2, 2"))
    P.append(raw(f"s_add_u32 s38, s38, s{S_W}"))
    P.append(raw("s_lshl_b32 s38, s38, 6"))
    P.append(raw("s_add_u32 s38, s38, 0x6000000"))
    P.append(raw("s_getreg_b32 s39, hwreg(HW_REG_HW_ID)"))
    P.append(raw("s_waitcnt lgkmcnt(0)"))
    P.append(raw("v_mov_b32 v0, s38"))
    for i in range(n):
        P.append(raw(f"v_mov_b32 v1, s{76+2*i}"))
        P.append(raw(f"global_store_dword v0, v1, s[36:37] offset:{4*i}"))
        P.append(raw("s_nop 1"))
    P.append(raw("v_mov_b32 v1, s39"))
    P.append(raw(f"global_store_dword v0, v1, s[36:37] offset:60"))
    P.append(raw("s_getreg_b32 s39, hwreg(HW_REG_XCC_ID)"))
    P.append(raw("s_nop 1"))
    P.append(raw("v_mov_b32 v1, s39"))
    P.append(raw(f"global_store_dword v0, v1, s[36:37] offset:56"))

def fixed(ins_list):
    return [marker('fence')] + ins_list + [marker('fence')]

def item_body(cfg, it, last):
    sem = []; F = Frag()
    XPOS = [0, 0, 0, 1] + [cfg.xpos0 + 16 * (i // 4) + (i % 4) for i in range(23)]
    st = (lambda i: sem.append(stamp(i + 5 * it))) if cfg.stamps else (lambda i: None)
    for k in range(18):
        if k % 2 == 0: sem.append(barrier(0))
        if k == 0: st(1)
        if k == 12:
            sem.append(marker(f'flushx{it}'))
            L = []; vok_calc(L, NEGM)
            if not last:
                L.append(raw(f"s_add_u32 s{S_X}, s{S_X}, {8*221184}"))
                L.append(raw(f"s_addc_u32 s{S_X+1}, s{S_X+1}, 0"))
                if cfg.warm: warm_x(L, NEGM + 2, NEGM + 11, cfg)
            sem.extend(fixed(L))
            sem.append(marker(f'kok{it}'))
        for T in range(8):
            G = k * 8 + T
            for n in range(27):
                if XPOS[n] == G:
                    for kk in range(2): sem.append(lds_read("ds_read_b128", XFr(2 * (n // 3) + kk, n % 3), 4, ('X', it, n), kk, 0))
            fr = F.next()
            for h in range(2): sem.append(lds_read("ds_read_b64_tr_b16", fr + 2 * h, 2, ('W', it, k), T, h * 1024))
            for qt in range(3):
                sem.append(mfma16(O_(T, qt), fr, XFr(k, qt), None if k == 0 else O_(T, qt)))
    st(2)
    for t in range(4):
        for qt in range(3):
            a_ = O_(2 * t, qt); b_ = O_(2 * t + 1, qt); q = Q_(qt, t)
            for r in (a_, a_ + 2, b_, b_ + 2):
                sem.append(valu(f"v_pk_mul_f32 {R(r,2)}, {R(r,2)}, s[{S_SC}:{S_SC+1}]", [r, r + 1], [r, r + 1]))
            sem.append(valu(f"v_cvt_pk_bf16_f32 v{q}, v{a_}, v{a_+1}", [a_, a_ + 1], [q]))
            sem.append(valu(f"v_cvt_pk_bf16_f32 v{q+1}, v{a_+2}, v{a_+3}", [a_ + 2, a_ + 3], [q + 1]))
            sem.append(valu(f"v_cvt_pk_bf16_f32 v{q+2}, v{b_}, v{b_+1}", [b_, b_ + 1], [q + 2]))
            sem.append(valu(f"v_cvt_pk_bf16_f32 v{q+3}, v{b_+2}, v{b_+3}", [b_ + 2, b_ + 3], [q + 3]))
            for x in range(2): sem.append(perm(f"v_permlane32_swap_b32 v{q+x}, v{q+2+x}", [q + x, q + 2 + x]))
            for x in range(2): sem.append(perm(f"v_permlane16_swap_b32 v{q+x}, v{q+2+x}", [q + x, q + 2 + x]))
    att_addrs(sem, NEGM)
    def hook(sem, j):
        if j == -1:
            st(3)
            if cfg.pa is not None: sem.append(salu(f"s_setprio {cfg.pa}"))
        if j == 0: st(4)
        if j == 12 and not last:
            sem.append(marker(f'flushk{it}'))
            sem.extend(fixed([valu(f"v_xor_b32 v{VOX2}, 64, v{VOX}", [VOX], [VOX2])]))
            sem.append(marker(f'xok{it+1}'))
    attention(sem, F, it, False, hook)
    epilogue_norm(sem)
    return schedule(sem, cfg.valu_rate, cfg.valu_burst)

def gen(cfg):
    P = []
    def sr(t): P.append(raw(t))
    V = lambda t, rd, wr: P.append(valu(t, rd, wr))
    NI = cfg.nitems
    sr(f"s_cmp_ge_u32 s2, {1024//NI}")
    sr("s_cbranch_scc1 L1_end")
    if cfg.stamps:
        P.append(stamp(0)); P.append(I('s_memrealtime s[96:97]', 'stamp'))
    sr("s_load_dwordx16 s[16:31], s[0:1], 0")
    sr("s_load_dwordx4 s[32:35], s[0:1], 64")
    sr("s_load_dwordx2 s[36:37], s[0:1], 96")
    sr("s_and_b32 s3, s2, 7")
    sr("s_lshr_b32 s4, s2, 3")
    sr("s_lshr_b32 s5, s3, 2")
    sr("s_and_b32 s6, s3, 3")
    sr("s_lshl_b32 s6, s6, 3")
    sr(f"s_and_b32 s{S_J7}, s4, 7")
    sr(f"s_add_u32 s{S_H}, s6, s{S_J7}")
    sr("s_lshr_b32 s7, s4, 3")
    LANE = FR + 8
    V(f"v_lshrrev_b32 v{FR}, 6, v0", [0], [FR])
    V(f"v_and_b32 v{LANE}, 63, v0", [0], [LANE])
    P.append(valu(f"v_readfirstlane_b32 s{S_W}, v{FR}", [FR], [], swr=[f"s{S_W}"]))
    sr("s_waitcnt lgkmcnt(0)")
    sr("s_cmp_eq_u32 s5, 0")
    sr("s_cselect_b64 s[8:9], s[16:17], s[26:27]")
    sr("s_cselect_b64 s[10:11], s[18:19], s[28:29]")
    sr("s_cselect_b64 s[12:13], s[20:21], s[30:31]")
    sr("s_cselect_b64 s[14:15], s[22:23], s[32:33]")
    sr("s_mul_i32 s38, s7, 221184")
    sr(f"s_add_u32 s{S_X}, s8, s38"); sr(f"s_addc_u32 s{S_X+1}, s9, 0")
    sr(f"s_mov_b32 s{S_X+2}, 221184"); sr(f"s_mov_b32 s{S_X+3}, 0x20000")
    sr(f"s_lshl_b32 s38, s{S_H}, 8")
    sr(f"s_add_u32 s{S_WQ}, s14, s38"); sr(f"s_addc_u32 s{S_WQ+1}, s15, 0")
    sr(f"s_sub_u32 s{S_WQ+2}, {576*8192}, s38"); sr(f"s_mov_b32 s{S_WQ+3}, 0x20000")
    sr(f"s_lshl_b32 s{S_W1024}, s{S_W}, 10")
    sr(f"s_lshl_b32 s{S_XB}, s{S_W}, 13")
    a, b, c, d, e = FR, FR + 1, FR + 2, FR + 3, FR + 4
    V(f"v_lshrrev_b32 v{d}, 4, v{LANE}", [LANE], [d])
    V(f"v_lshl_add_u32 v{a}, s{S_W}, 2, v{d}", [d], [a])
    V(f"v_and_b32 v{b}, 15, v{LANE}", [LANE], [b])
    V(f"v_and_b32 v{c}, 3, v{a}", [a], [c])
    V(f"v_lshrrev_b32 v{e}, 3, v{a}", [a], [e])
    V(f"v_lshl_add_u32 v{c}, v{e}, 2, v{c}", [e, c], [c])
    V(f"v_lshlrev_b32 v{c}, 1, v{c}", [c], [c])
    V(f"v_xor_b32 v{c}, v{c}, v{b}", [c, b], [c])
    V(f"v_lshlrev_b32 v{c}, 4, v{c}", [c], [c])
    V(f"v_lshl_add_u32 v{VOW}, v{a}, 13, v{c}", [a, c], [VOW])
    sr(f"s_mul_i32 s38, s{S_W}, 48")
    V(f"v_lshrrev_b32 v{c}, 3, v{LANE}", [LANE], [c])
    V(f"v_add_u32 v{c}, s38, v{c}", [c], [c])
    V(f"v_mul_u32_u24 v{c}, 1152, v{c}", [c], [c])
    V(f"v_and_b32 v{e}, 7, v{LANE}", [LANE], [e])
    V(f"v_xor_b32 v{e}, v{e}, v{d}", [e, d], [e])
    V(f"v_lshl_add_u32 v{VOX}, v{e}, 4, v{c}", [e, c], [VOX])
    V(f"v_xor_b32 v{VOX2}, 64, v{VOX}", [VOX], [VOX2])

    main = []
    for it in range(NI):
        last = (it == NI - 1)
        main.extend(item_body(cfg, it, last))
        M = main
        T0, T1 = FR + 4, FR + 5
        if cfg.stamps: M.append(stamp(5 + 5 * it)) if it == 0 else None
        M.append(marker('flush'))
        M.append(valu(f"v_cmp_nge_f32 vcc, s{S_THR}, v{L_(0)}", [L_(0)], [], swr=['vcc']))
        M.append(valu(f"v_cmp_nge_f32 s[72:73], s{S_THR}, v{L_(1)}", [L_(1)], [], swr=['s72']))
        M.append(valu(f"v_cmp_nge_f32 s[74:75], s{S_THR}, v{L_(2)}", [L_(2)], [], swr=['s74']))
        M.append(raw("s_nop 4"))
        M.append(raw("s_or_b64 s[72:73], s[72:73], s[74:75]"))
        M.append(raw("s_or_b64 s[72:73], s[72:73], vcc"))
        M.append(raw("s_cmp_lg_u64 s[72:73], 0"))
        M.append(raw("s_cselect_b32 s72, 1, 0"))
        M.append(raw(f"s_lshl_b32 s73, s{S_W}, 2"))
        M.append(raw(f"s_add_u32 s73, s73, {RINGB}"))
        M.append(valu(f"v_mov_b32 v{T0}, s73", [], [T0]))
        M.append(valu(f"v_mov_b32 v{T1}, s72", [], [T1]))
        M.append(I('?flagw', 'dsw', [T0, T1], tag=('F', it, 0), extra=(it, T0, T1)))
        M.append(valu(f"v_mov_b32 v{T0}, {RINGB}", [], [T0]))
        M.append(waitall(vm=False))
        M.append(barrier())
        M.append(I('?flagr', 'dsr', [T0], rng(FR, 4), tag=('F', it, 0), extra=(it, T0)))
        M.append(valu(f"v_or3_b32 v{FR}, v{FR}, v{FR+1}, v{FR+2}", [FR, FR + 1, FR + 2], [FR]))
        M.append(valu(f"v_or_b32 v{FR}, v{FR}, v{FR+3}", [FR, FR + 3], [FR]))
        M.append(valu(f"v_readfirstlane_b32 s72, v{FR}", [FR], [], swr=['s72']))
        M.append(raw(f"s_mov_b32 s{S_IT}, {it}"))
        M.append(raw("s_nop 2"))
        M.append(raw("s_cmp_lg_u32 s72, 0"))
        M.append(raw("s_cbranch_scc1 L1_fallback"))
        M.extend(stores(cfg))
        M.append(label(f"L1_after{it}"))
        if cfg.pa is not None: M.append(raw(f"s_setprio {cfg.pq}"))
        if not last:
            for sreg, inc in ((S_K, 8 * 32 * 131072), (S_V, 8 * 32 * 131072), (S_O, 8 * 1572864)):
                M.append(raw(f"s_add_u32 s{sreg}, s{sreg}, {inc}")); M.append(raw(f"s_addc_u32 s{sreg+1}, s{sreg+1}, 0"))
            qp_addrs(M, FR + 8)
            M.append(marker(f'kvok{it+1}'))
    xzone = {it: it % 2 for it in range(NI)}
    earliest = {}
    for it in range(NI):
        earliest[('K', it)] = f'kok{it}'
        if it: earliest[('X', it)] = f'xok{it}'; earliest[('V', it)] = f'kvok{it}'
    pre, main, loc = place_tiles(main, cfg, xzone, earliest)
    for ins in main:
        if ins.text == '?flagw':
            it, T0, T1 = ins.extra
            ins.text = f"ds_write_b32 v{T0}, v{T1} offset:{loc[('F', it, 0)] - RINGB}"; ins.extra = None
        if ins.text == '?flagr':
            it, T0 = ins.extra
            ins.text = f"ds_read_b128 {R(FR,4)}, v{T0} offset:{loc[('F', it, 0)] - RINGB}"; ins.extra = None
    for g in pre: P.extend(g)
    if cfg.warm:
        warm_x(P, ACC, NEGM + 9, cfg)
        w1 = ACC + 8
        sr("s_and_b32 s38, s7, 7")
        sr("s_lshl_b32 s38, s38, 2"); sr(f"s_add_u32 s38, s38, s{S_W}"); sr("s_mul_i32 s38, s38, 36")
        V(f"v_min_u32 v{w1}, 35, v{LANE}", [LANE], [w1])
        V(f"v_add_u32 v{w1}, s38, v{w1}", [w1], [w1])
        V(f"v_and_b32 v{w1+1}, 1, v{w1}", [w1], [w1 + 1])
        V(f"v_lshrrev_b32 v{w1}, 1, v{w1}", [w1], [w1])
        V(f"v_lshlrev_b32 v{w1}, 13, v{w1}", [w1], [w1])
        V(f"v_lshl_add_u32 v{w1}, v{w1+1}, 7, v{w1}", [w1 + 1, w1], [w1])
        P.append(vload(f"buffer_load_dword v{NEGM+8}, v{w1}, s[{S_WQ}:{S_WQ+3}], 0 offen", [w1], [NEGM + 8]))
    sr("s_lshl_b32 s38, s7, 5"); sr(f"s_add_u32 s38, s38, s{S_H}"); sr("s_lshl_b32 s38, s38, 17")
    sr(f"s_add_u32 s{S_K}, s10, s38"); sr(f"s_addc_u32 s{S_K+1}, s11, 0")
    sr(f"s_mov_b32 s{S_K+2}, 131072"); sr(f"s_mov_b32 s{S_K+3}, 0x20000")
    sr(f"s_add_u32 s{S_V}, s12, s38"); sr(f"s_addc_u32 s{S_V+1}, s13, 0")
    sr(f"s_mov_b32 s{S_V+2}, 131072"); sr(f"s_mov_b32 s{S_V+3}, 0x20000")
    sr("s_lshl_b32 s38, s5, 4"); sr("s_add_u32 s38, s38, s7"); sr("s_mul_i32 s38, s38, 1572864")
    sr(f"s_add_u32 s{S_O}, s36, s38"); sr(f"s_addc_u32 s{S_O+1}, s37, 0")
    sr(f"s_mov_b32 s{S_O+2}, 1572864"); sr(f"s_mov_b32 s{S_O+3}, 0x20000")
    sr(f"s_mov_b32 s{S_OQ1}, 131072"); sr(f"s_mov_b32 s{S_OQ2}, 262144")
    sr(f"s_mov_b32 s{S_THR}, 0x{f32bits(2.0**40):x}")
    sc = f32bits(math.log2(math.e) / math.sqrt(128.0))
    sr(f"s_mov_b32 s{S_SC}, 0x{sc:x}"); sr(f"s_mov_b32 s{S_SC+1}, 0x{sc:x}")
    V(f"v_and_b32 v{c}, 7, v{a}", [a], [c])
    V(f"v_lshlrev_b32 v{c}, 1, v{c}", [c], [c])
    V(f"v_xor_b32 v{c}, v{c}, v{b}", [c, b], [c])
    V(f"v_lshlrev_b32 v{c}, 4, v{c}", [c], [c])
    V(f"v_lshl_add_u32 v{VOV}, v{a}, 8, v{c}", [a, c], [VOV])
    qp_addrs(P, FR + 8)
    if cfg.pq: sr(f"s_setprio {cfg.pq}")
    if cfg.pq0 is not None:
        sr("s_cmp_lt_u32 s2, 256"); sr("s_cbranch_scc0 L1_np"); sr(f"s_setprio {cfg.pq0}"); P.append(label("L1_np"))
    P.extend(main)
    if cfg.warm_wo:
        sr("s_load_dwordx2 s[8:9], s[0:1], 32")
        sr("s_load_dwordx2 s[10:11], s[0:1], 72")
        sr("s_and_b32 s3, s2, 3"); sr("s_lshr_b32 s4, s2, 3"); sr("s_lshl_b32 s4, s4, 2"); sr("s_add_u32 s4, s4, s3")
        sr("s_lshl_b32 s4, s4, 2"); sr(f"s_add_u32 s4, s4, s{S_W}"); sr("s_mul_i32 s4, s4, 36")
        lane_id(P, FR)
        V(f"v_min_u32 v{FR}, 35, v{FR}", [FR], [FR])
        V(f"v_add_u32 v{FR}, s4, v{FR}", [FR], [FR])
        V(f"v_lshlrev_b32 v{FR}, 7, v{FR}", [FR], [FR])
        sr("s_waitcnt lgkmcnt(0)")
        sr("s_bitcmp0_b32 s2, 2")
        sr(f"s_cselect_b64 s[{S_X}:{S_X+1}], s[8:9], s[10:11]")
        sr(f"s_mov_b32 s{S_X+2}, {4096*1152}")
        P.append(vload(f"buffer_load_dword v{FR+1}, v{FR}, s[{S_X}:{S_X+3}], 0 offen", [FR], [FR + 1]))
    if cfg.stamps:
        P.append(waitall())
        P.append(I('s_memrealtime s[98:99]', 'stamp'))
        dump_stamps(P, 12)
    sr("s_endpgm")
    reissue = {}
    cur = []
    for ins in main:
        if ins.kind == 'dma': cur.append(ins.tag)
        if ins.kind == 'label' and ins.text.startswith('L1_after'):
            it = int(ins.text[8:-1]); reissue[it] = [t for t in dict.fromkeys(cur) if t[1] == it + 1]
    P.append(label("L1_fallback"))
    sr("s_nop 7")
    vok_calc(P, FR)
    for qt in range(3): V(f"v_mov_b32 v{NM(qt)+1}, 0xff800000", [], [NM(qt) + 1])
    sr(f"s_mov_b32 s{S_CNT}, 0")
    P.append(label("L1_fb_loop"))
    P.append(waitall())
    P.append(barrier())
    for c in range(2):
        P.append(salu(f"s_add_u32 m0, s{S_W1024}, {c*4096}", swr=['m0']))
        P.append(salu(f"s_add_u32 s{S_TMP}, s{S_CNT}, {c*4096}"))
        P.append(dma(f"buffer_load_dwordx4 v{VOK}, s[{S_K}:{S_K+3}], s{S_TMP} offen lds", [VOK]))
    P.append(waitall())
    P.append(barrier())
    for kt in range(2):
        for t in range(4):
            fr = ACC + (kt * 4 + t) * 4
            P.append(ds_read(f"ds_read_b128 {R(fr,4)}, v{KAD+t} offset:{kt*4096}", KAD + t, rng(fr, 4)))
    for kt in range(2):
        for t in range(4):
            fr = ACC + (kt * 4 + t) * 4
            for qt in range(3):
                d = S_(XB, kt, qt)
                P.append(mfma16(d, fr, Q_(qt, t), d if t else None))
    for qt in range(3):
        m = NM(qt) + 1
        for kt in range(2):
            a_ = S_(XB, kt, qt)
            V(f"v_max3_f32 v{m}, v{m}, v{a_}, v{a_+1}", [m, a_, a_ + 1], [m])
            V(f"v_max3_f32 v{m}, v{m}, v{a_+2}, v{a_+3}", [m, a_ + 2, a_ + 3], [m])
    sr("s_nop 7")
    sr(f"s_add_u32 s{S_CNT}, s{S_CNT}, 8192")
    sr(f"s_cmp_lt_u32 s{S_CNT}, 131072")
    sr("s_cbranch_scc1 L1_fb_loop")
    for qt in range(3): xlane_max(P, NM(qt) + 1, NM(qt) + 2)
    for qt in range(3): set_negm(P, qt, NM(qt) + 1)
    P.append(waitall())
    P.append(barrier())
    sem = []; F = Frag()
    attention(sem, F, 9, True)
    epilogue_norm(sem)
    sch = schedule(sem, cfg.valu_rate, cfg.valu_burst)
    pre2, fb, _ = place_tiles(sch, cfg, {9: 0})
    for g in pre2: P.extend(g)
    P.extend(fb)
    P.extend(stores(cfg))
    P.append(waitall())
    P.append(barrier())
    V(f"v_xor_b32 v{VOX2}, 64, v{VOX}", [VOX], [VOX2])
    for it in range(NI):
        sr(f"s_cmp_eq_u32 s{S_IT}, {it}")
        sr(f"s_cbranch_scc0 L1_fbn{it}")
        for t in reissue.get(it, []):
            for g in tile_dma(t, loc[t], cfg): P.extend(g)
        P.append(waitall())
        sr("s_nop 7")
        sr(f"s_branch L1_after{it}")
        P.append(label(f"L1_fbn{it}"))
    P.append(label("L1_end"))
    sr("s_endpgm")
    if cfg.drop: P = [i for i in P if not (i.kind == 'dma' and i.tag and i.tag[0] in cfg.drop)]
    if cfg.drop: P = [i for i in P if 's_cbranch_scc1 L1_fallback' not in i.text]
    P = insert_waits(P)
    P, nn = insert_nops(P)
    return P, nn, loc
```

```python
from asmlib import *

class Cfg2:
    nob = False
    nodma = False

AC = 256
def ACC_(nu, qt): return AC + (nu * 6 + qt) * 4
BF = 32; NBS = 7
def B_(k, qt): return BF + (k % NBS) * 24 + qt * 4
FR = 200; NFR = 6
VOD = 16
AAD = 25; VOB = 26; LANE = 27
T = 4
NSL = 4; SL = 9216; WREG = NSL * SL
S_O, S_WO, S_OUT = 40, 44, 48
S_W = 52; S_WB = 53; S_TMP = 54; S_QO = 56
S_T2 = 55

def dma_tile(k):
    out = []
    for j in range(9):
        g = [salu(f"s_add_u32 m0, s{S_WB}, {(k % NSL) * SL + j * 1024}", swr=['m0'])]
        if j == 0: g.append(salu(f"s_mov_b32 s{S_TMP}, {k * 32 * 1152}"))
        g.append(dma(f"buffer_load_dwordx4 v{VOD+j}, s[{S_WO}:{S_WO+3}], s{S_TMP} offen lds", [VOD + j], tag=('W', k)))
        out.append(g)
    return out

def bload(k, qt):
    return vload(f"buffer_load_dwordx4 {R(B_(k,qt),4)}, v{VOB}, s[{S_O}:{S_O+3}], s{S_QO+qt} offen offset:{(k%4)*1024}", [VOB], rng(B_(k, qt), 4))

def gen(cfg):
    P = []
    def sr(t): P.append(raw(t))
    V = lambda t, rd, wr: P.append(valu(t, rd, wr))
    sr("s_cmp_ge_u32 s2, 256")
    sr("s_cbranch_scc1 L2_end")
    sr("s_load_dwordx2 s[16:17], s[0:1], 32")
    sr("s_load_dwordx4 s[20:23], s[0:1], 72")
    sr("s_load_dwordx2 s[24:25], s[0:1], 96")
    sr("s_and_b32 s3, s2, 7")
    sr("s_lshr_b32 s4, s2, 3")
    sr("s_lshl_b32 s5, s3, 3")
    sr("s_lshr_b32 s6, s4, 2")
    sr("s_add_u32 s5, s5, s6")
    sr("s_and_b32 s6, s4, 3")
    sr("s_lshr_b32 s7, s5, 5")
    V(f"v_lshrrev_b32 v{T}, 6, v0", [0], [T])
    V(f"v_and_b32 v{LANE}, 63, v0", [0], [LANE])
    P.append(valu(f"v_readfirstlane_b32 s{S_W}, v{T}", [T], [], swr=[f"s{S_W}"]))
    sr("s_waitcnt lgkmcnt(0)")
    sr("s_cmp_eq_u32 s7, 0")
    sr("s_cselect_b64 s[8:9], s[16:17], s[20:21]")
    sr("s_mul_i32 s10, s5, 786432")
    sr(f"s_add_u32 s{S_O}, s24, s10"); sr(f"s_addc_u32 s{S_O+1}, s25, 0"); sr(f"s_and_b32 s{S_O+1}, s{S_O+1}, 0xffff")
    sr(f"s_mov_b32 s{S_O+2}, 786432"); sr(f"s_mov_b32 s{S_O+3}, 0x20000")
    sr("s_mul_i32 s10, s6, 288")
    sr(f"s_mul_i32 s11, s{S_W}, {1024*1152}")
    sr("s_add_u32 s10, s10, s11")
    sr(f"s_add_u32 s{S_WO}, s8, s10"); sr(f"s_addc_u32 s{S_WO+1}, s9, 0"); sr(f"s_and_b32 s{S_WO+1}, s{S_WO+1}, 0xffff")
    sr(f"s_sub_u32 s{S_WO+2}, {4096*1152}, s10"); sr(f"s_mov_b32 s{S_WO+3}, 0x20000")
    sr("s_and_b32 s10, s5, 31")
    sr(f"s_mul_i32 s10, s10, {96*2304}")
    sr("s_mul_i32 s11, s7, 1152")
    sr("s_add_u32 s10, s10, s11")
    sr("s_mul_i32 s11, s6, 288")
    sr("s_add_u32 s10, s10, s11")
    sr(f"s_add_u32 s{S_OUT}, s22, s10"); sr(f"s_addc_u32 s{S_OUT+1}, s23, 0"); sr(f"s_and_b32 s{S_OUT+1}, s{S_OUT+1}, 0xffff")
    sr(f"s_mov_b32 s{S_OUT+2}, {95*2304+288}"); sr(f"s_mov_b32 s{S_OUT+3}, 0x20000")
    sr(f"s_mul_i32 s{S_WB}, s{S_W}, {WREG}")
    for qt in range(6): sr(f"s_mov_b32 s{S_QO+qt}, {qt*131072}")
    sr("s_movk_i32 s10, 3641")
    for j in range(9):
        V(f"v_add_u32 v{T}, {64*j}, v{LANE}", [LANE], [T])
        V(f"v_mul_u32_u24 v{T+1}, s10, v{T}", [T], [T + 1])
        V(f"v_lshrrev_b32 v{T+1}, 16, v{T+1}", [T + 1], [T + 1])
        V(f"v_mul_u32_u24 v{T+2}, 18, v{T+1}", [T + 1], [T + 2])
        V(f"v_sub_u32 v{T+2}, v{T}, v{T+2}", [T, T + 2], [T + 2])
        V(f"v_mul_u32_u24 v{T+1}, 1152, v{T+1}", [T + 1], [T + 1])
        V(f"v_lshl_add_u32 v{VOD+j}, v{T+2}, 4, v{T+1}", [T + 2, T + 1], [VOD + j])
    sr(f"s_lshl_b32 s10, s{S_W}, 15")
    V(f"v_lshlrev_b32 v{VOB}, 4, v{LANE}", [LANE], [VOB])
    V(f"v_add_u32 v{VOB}, s10, v{VOB}", [VOB], [VOB])
    for k in range(max(NSL, NBS) - 1):
        if k < NSL - 1:
            for g in dma_tile(k): P.extend(g)
        if k < NBS - 1:
            if k and k % 4 == 0: V(f"v_add_u32 v{VOB}, 4096, v{VOB}", [VOB], [VOB])
            for qt in range(6): P.append(bload(k, qt))
    V(f"v_lshrrev_b32 v{T}, 2, v{LANE}", [LANE], [T])
    V(f"v_mul_u32_u24 v{T}, 288, v{T}", [T], [T])
    V(f"v_and_b32 v{T+1}, 3, v{LANE}", [LANE], [T + 1])
    V(f"v_lshl_add_u32 v{T}, v{T+1}, 3, v{T}", [T + 1, T], [T])
    V(f"v_add_u32 v{AAD}, s{S_WB}, v{T}", [T], [AAD])
    sem = []; nf = 0
    for k in range(32):
        sem.append(I('', 'barrier', tag=k))
        if k >= NBS - 1 or True:
            kk = k
            if kk >= NBS - 1:
                if kk % 4 == 0: sem.append(valu(f"v_add_u32 v{VOB}, 4096, v{VOB}", [VOB], [VOB]))
                for qt in range(6): sem.append(bload(kk, qt))
        for nu in range(9):
            fr = FR + (nf % NFR) * 4; nf += 1
            for h in range(2):
                sem.append(ds_read(f"ds_read_b64_tr_b16 {R(fr+2*h,2)}, v{AAD} offset:{(k%NSL)*SL + h*4608 + nu*32}", AAD, rng(fr + 2 * h, 2), tag=('W', k)))
            for qt in range(6):
                sem.append(mfma16(ACC_(nu, qt), fr, B_(k, qt), None if k == 0 else ACC_(nu, qt)))
    sch = schedule(sem)
    out = []; seen = set(); lastpos = {}
    for i, ins in enumerate(sch):
        if ins.kind == 'dsr': lastpos[ins.tag] = i
    pend = []; cnt = 0; nxt = NSL - 1
    for i, ins in enumerate(sch):
        if ins.kind == 'dsr' and ins.tag not in seen:
            seen.add(ins.tag); out.append(waittag(vm=[ins.tag]))
        out.append(ins)
        if nxt < 32 and not pend and (nxt - NSL < 0 or i >= lastpos[('W', nxt - NSL)]):
            if nxt - NSL >= 0: pend.append([waittag(lg=[('W', nxt - NSL)])])
            pend.extend(dma_tile(nxt)); nxt += 1; cnt = 0
        if ins.kind == 'mfma' and pend:
            cnt += 1
            if cnt % 4 == 0: out.extend(pend.pop(0))
    assert not pend and nxt == 32
    P.extend(out)
    CP = 27 * 1024
    V(f"v_lshlrev_b32 v{T}, 4, v{LANE}", [LANE], [T])
    sr(f"s_mul_i32 s10, s{S_W}, {CP}")
    V(f"v_add_u32 v{T+1}, s10, v{T}", [T], [T + 1])
    sr(f"s_lshl_b32 s10, s{S_W}, 10")
    V(f"v_add_u32 v{T+2}, s10, v{T}", [T], [T + 2])
    V(f"v_add_u32 v{T+3}, {2*CP}, v{T+2}", [T + 2], [T + 3])
    V(f"v_and_b32 v{T+4}, 15, v{LANE}", [LANE], [T + 4])
    V(f"v_mul_u32_u24 v{T+4}, 2304, v{T+4}", [T + 4], [T + 4])
    V(f"v_lshrrev_b32 v{T+5}, 4, v{LANE}", [LANE], [T + 5])
    V(f"v_lshl_add_u32 v{T+4}, v{T+5}, 3, v{T+4}", [T + 5, T + 4], [T + 4])
    for rho in range(2):
        P.append(waitall(vm=False))
        P.append(barrier())
        for q3 in range(3):
            for nu in range(9):
                a = ACC_(nu, rho * 3 + q3)
                P.append(ds_write(f"ds_write_b128 v{T+1}, {R(a,4)} offset:{(q3*9+nu)*1024}", rng(a, 4) + [T + 1]))
        P.append(waitall(vm=False))
        P.append(barrier())
        for i in range(7):
            b = BF + (i % 4) * 16
            for c in range(4):
                P.append(ds_read(f"ds_read_b128 {R(b+4*c,4)}, v{T+2+c//2} offset:{i*4096 + (c%2)*CP}", T + 2 + c // 2, rng(b + 4 * c, 4)))
            if i % 4 == 3 or i == 6:
                for ii in range(i - (i % 4), i + 1):
                    b = BF + (ii % 4) * 16
                    for e in range(0, 4, 2):
                        V(f"v_pk_add_f32 {R(b+e,2)}, {R(b+e,2)}, {R(b+4+e,2)}", [b + e, b + e + 1, b + 4 + e, b + 5 + e], [b + e, b + e + 1])
                        V(f"v_pk_add_f32 {R(b+8+e,2)}, {R(b+8+e,2)}, {R(b+12+e,2)}", [b + 8 + e, b + 9 + e, b + 12 + e, b + 13 + e], [b + 8 + e, b + 9 + e])
                        V(f"v_pk_add_f32 {R(b+e,2)}, {R(b+e,2)}, {R(b+8+e,2)}", [b + e, b + e + 1, b + 8 + e, b + 9 + e], [b + e, b + e + 1])
                    V(f"v_cvt_pk_bf16_f32 v{b}, v{b}, v{b+1}", [b, b + 1], [b])
                    V(f"v_cvt_pk_bf16_f32 v{b+1}, v{b+2}, v{b+3}", [b + 2, b + 3], [b + 1])
                    sr(f"s_add_u32 s10, s{S_W}, {4*ii}")
                    sr("s_mul_i32 s11, s10, 57")
                    sr("s_lshr_b32 s11, s11, 9")
                    sr("s_mul_i32 s12, s11, 9")
                    sr("s_sub_u32 s12, s10, s12")
                    sr(f"s_mul_i32 s11, s11, {16*2304}")
                    sr("s_lshl_b32 s12, s12, 5")
                    sr("s_add_u32 s11, s11, s12")
                    sr(f"s_add_u32 s11, s11, {rho*48*2304}")
                    sr("s_cmp_ge_u32 s10, 27")
                    sr("s_cselect_b32 s11, 0x40000000, s11")
                    P.append(vstore(f"buffer_store_dwordx2 {R(b,2)}, v{T+4}, s[{S_OUT}:{S_OUT+3}], s11 offen", [b, b + 1, T + 4], wide=False))
    P.append(label("L2_end"))
    sr("s_endpgm")
    if cfg.nob: P = [i for i in P if i.kind != 'vld']
    if cfg.nodma: P = [i for i in P if i.kind != 'dma']
    P = insert_waits(P)
    P, nn = insert_nops(P)
    return P, nn
```

```python
import sys, k1, k2
from asmlib import render
NAME = "concat_heads__mha_block_cached__mha_block_cached__near_ridge"
def build(c1, c2, path):
    ref = open(f"cdna_kernels/{NAME}.s.ref").read()
    head = []
    for line in ref.splitlines():
        if line.startswith(';') and '@launch' not in line and 'Override launch' not in line and 'grid=ceil' not in line: head.append(line)
        if not line.startswith(';'): break
    P1, n1, loc = k1.gen(c1)
    P2, n2 = k2.gen(c2)
    s = "\n".join(head) + "\n"
    s += f"; @launch kernel=attn_kernel grid=({1024//c1.nitems},1,1) block=(256,1,1) lds=81920\n"
    s += "; @launch kernel=oproj_kernel grid=(256,1,1) block=(256,1,1) lds=147456\n" * getattr(c2, "rep", 1)
    s += '.amdgcn_target "amdgcn-amd-amdhsa--gfx950"\n.text\n'
    for nm, P in (("attn_kernel", P1), ("oproj_kernel", P2)):
        s += f".globl {nm}\n.p2align 8\n.type {nm},@function\n{nm}:\n" + render(P)
    s += '.section .rodata,"a"\n'
    for nm, vg, acc in (("attn_kernel", 256, 256), ("oproj_kernel", 224 + 216, 224)):
        s += f""".p2align 6
.amdhsa_kernel {nm}
  .amdhsa_next_free_vgpr {vg}
  .amdhsa_next_free_sgpr 100
  .amdhsa_accum_offset {acc}
  .amdhsa_group_segment_fixed_size 0
  .amdhsa_kernarg_size 104
  .amdhsa_user_sgpr_count 2
  .amdhsa_user_sgpr_kernarg_segment_ptr 1
  .amdhsa_system_sgpr_workgroup_id_x 1
.end_amdhsa_kernel
"""
    open(path, "w").write(s)
    print("instrs", len(P1), len(P2), "nops", n1, n2, "bytes", len(s))
if __name__ == "__main__":
    c1 = k1.Cfg(); c2 = k2.Cfg2(); path = f"cdna_kernels/{NAME}.s"
    for a in sys.argv[1:]:
        if a.startswith("out="): path = a[4:]; continue
        k, v = a.split("=", 1)
        tgt = c2 if k.startswith("k2.") else c1
        k = k.split(".")[-1]
        try: v = eval(v)
        except Exception: pass
        setattr(tgt, k, v)
    build(c1, c2, path)
```

```python
from asmlib import *
import math, struct

def f32bits(x): return struct.unpack('<I', struct.pack('<f', x))[0]

class Cfg:
    valu_rate = 1.3
    valu_burst = 2
    kv_flags = " nt"
    stamps = False
    warm = True
    dma_gap = 2
    xpos0 = 13
    kvdepth = 99
    prio_a = 2
    prio_g = 0
    gdelay = 0
    samecu = True
    pf = 'sc0 sc1'
    drop = ''
    nofb = False
    gslp = 16
    aslp = 16
    verbose = False

ACC = 160
def O_(s, qt): return ACC + (s * 3 + qt) * 4
QB = 112
def Q_(qt, t): return QB + (qt * 4 + t) * 4
XB, YB = 64, 88
def S_(buf, kt, qt): return buf + (kt * 3 + qt) * 4
NEGM = 52
def NM(qt): return NEGM + qt * 4
LB = 40
def L_(qt): return LB + qt * 4
ONES = 36
FR = 16; NFR = 5
KAD = 4; VAD = 8
VOV, VOK = 2, 3
TA, TB = 0, 1
WAD = 4; XAD = 12
VOW, VOX, VOX2 = 40, 41, 42
XF = 64; NXF = 8
def XFr(k, qt): return XF + (k % NXF) * 12 + qt * 4
SLOT = 8192; GR = 1024; NXC = 4
WBASE = 32768
FLAGLOC = 65536
OACC = 148
def OA(nu, qt): return OACC + (nu * 3 + qt) * 4
BST = 52; NBS = 8
def B_(u, qt): return BST + (u % NBS) * 12 + qt * 4
GFR = 28; NGFR = 6
VOD = 4; AAD = 9; VOB = 10
OSL = 10240

S_X, S_WQ, S_K, S_V, S_O, S_Q = 40, 44, 48, 52, 56, 80
S_WOW = 36
S_WO, S_OUT = 48, 52
S_W = 60; S_W1024 = 61; S_XBASE = 98
S_C1, S_C2 = 64, 65
S_TMP = 66; S_THR = 67; S_SC = 68; S_CNT = 70
S_M = 71
S_ITEM = 62; S_OFF = 63
S_DBG = 84
S_GBI = 86
S_R = 87
S_QSH = 88; S_QDW = 89
S_WS = 90
S_SA = 92
S_OFFN = 78; S_OFF2N = 79; S_ROT = 99
S_OFF2 = 93; S_SPIN = 94; S_KH = 95; S_QH = 96; S_OB = 97
QWS = 0x3200000
FLGWS = 0x6400000
S_FLG = 6

class Rot:
    def __init__(self, base, n): self.n = 0; self.base = base; self.k = n
    def next(self):
        r = self.base + (self.n % self.k) * 4; self.n += 1; return r

def lane_id(p, r):
    p.append(valu(f"v_mbcnt_lo_u32_b32 v{r}, -1, 0", [], [r]))
    p.append(valu(f"v_mbcnt_hi_u32_b32 v{r}, -1, v{r}", [r], [r]))

def tloc(t):
    kind, it, i = t
    if kind == 'K': return (i % 4) * SLOT, SLOT
    if kind == 'V': return 4 * SLOT + (i % 4) * SLOT, SLOT
    if kind == 'W': return WBASE + (i % 6) * SLOT, SLOT
    if kind == 'X': return 0, 4 * SLOT
    if kind == 'P': return (i % 4) * OSL, OSL

def tile_dma(tile, cur, cfg):
    kind, it, i = tile
    loc, _ = tloc(tile); rel = it - cur
    assert rel in (0, 1)
    out = []
    if kind == 'P':
        for c in range(5):
            g = [salu(f"s_add_u32 m0, s{S_W1024}, {loc + c * 2048}", swr=['m0'])]
            g.append(salu(f"s_add_u32 s{S_TMP}, s{S_OFFN if rel else S_OFF}, {i * 32 * 1152}"))
            g.append(dma(f"buffer_load_dwordx4 v{VOD+c}, s[{S_WO}:{S_WO+3}], s{S_TMP} offen lds", [VOD + c], tag=tile))
            out.append(g)
        return out
    for c in range(2):
        if kind == 'X':
            st, qt = i // 3, i % 3
            vo = VOX2 if c else VOX
            out.append([salu(f"s_add_u32 m0, s{S_XBASE}, {(i % NXC) * 2048 + c * 1024}", swr=['m0']),
                        salu(f"s_mov_b32 s{S_TMP}, {(qt * 16 + c * 8) * 1152 + st * 128}"),
                        dma(f"buffer_load_dwordx4 v{vo}, s[{S_X}:{S_X+3}], s{S_TMP} offen lds", [vo], tag=tile)])
            continue
        if kind == 'W': goff = (i * 32 + c * 16) * 8192; srd = S_WQ; vo = VOW; fl = ""; so = S_OFF2N if rel else S_OFF2
        elif kind == 'K': goff = i * 8192 + c * 4096; srd = S_K; vo = VOK; fl = cfg.kv_flags; so = S_OFFN if rel else S_OFF
        else: goff = i * 8192 + c * 4096; srd = S_V; vo = VOV; fl = cfg.kv_flags; so = S_OFFN if rel else S_OFF
        out.append([salu(f"s_add_u32 m0, s{S_W1024}, {loc + c * 4096}", swr=['m0']),
                    salu(f"s_add_u32 s{S_TMP}, s{so}, {goff}"),
                    dma(f"buffer_load_dwordx4 v{vo}, s[{srd}:{srd+3}], s{S_TMP} offen{fl} lds", [vo], tag=tile)])
    return out

def lds_read(op, dst, n, tile, sel, inner):
    kind = tile[0]
    ad = {'K': KAD, 'V': VAD, 'W': WAD, 'X': XAD, 'P': AAD}[kind] + sel
    loc, _ = tloc(tile)
    if kind == 'W': loc -= WBASE
    if kind == 'X': loc = (tile[2] % NXC) * 2048
    return I(f"{op} {R(dst, n)}, v{ad} offset:{loc + inner}", 'dsr', [ad], rng(dst, n), tag=tile)

def place_tiles(prog, cfg, extra=(), depth=None, skip=()):
    depth = depth or {}
    nb = -1; first = {}; last = {}; lastpos = {}; firstpos = {}; barpos = []
    for i, ins in enumerate(prog):
        if ins.kind == 'barrier' and ins.tag is not None: nb += 1; barpos.append(i)
        if ins.kind == 'dsr' and ins.tag is not None:
            t = ins.tag
            assert nb >= 0
            first.setdefault(t, nb); last[t] = nb; lastpos[t] = i; firstpos.setdefault(t, i)
    nbar = nb + 1
    for n, t in enumerate(extra):
        first[t] = nbar; last[t] = nbar; firstpos[t] = len(prog) + n
    dl = {t: (firstpos[t] if (t[0] == 'X' or t in extra) else barpos[first[t]]) for t in first}
    freeat = [-1] * 80
    issue_at = {}
    xprev = {}; xslot = {}
    for t in sorted(first, key=lambda t: firstpos[t]):
        kind, it, i = t
        loc, size = tloc(t)
        gs = range(loc // GR, (loc + size) // GR)
        if kind == 'X':
            sl = i % NXC
            if not xslot: xfree0 = max(freeat[g] for g in gs)
            if sl in xslot: xprev[t] = xslot[sl]
            else: issue_at[t] = xfree0
            xslot[sl] = t
            for g in gs: freeat[g] = max(freeat[g], last[t] + 1)
            continue
        if any(g < 32 for g in gs): xslot = {}
        f = max(freeat[g] for g in gs)
        assert f < first[t] or f == -1 or (t in extra and f <= nbar), (t, f, first[t])
        issue_at[t] = max(f, first[t] - depth.get(kind, 99))
        for g in gs: freeat[g] = last[t] + 1
    need = [[] for _ in range(nbar + 1)]; free = [[] for _ in range(nbar + 2)]
    for t in first:
        if t[0] != 'X': need[first[t]].append(t)
        free[last[t] + 1].append(t)
    issue = [[] for _ in range(nbar + 1)]; pre = []
    for t in sorted(issue_at, key=lambda t: firstpos[t]):
        if t in skip: continue
        if issue_at[t] < 0 and first[t] == 0: pre.append(t)
        else: issue[max(0, issue_at[t])].append(t)
    late = issue[nbar]
    out = []; nb = -1; pend = []; cnt = 0; seenx = set(); cur = 0
    xq = sorted(xprev, key=lambda t: firstpos[t])
    def push(t, pre_ins=None):
        pend.append((t, pre_ins, 0)); pend.sort(key=lambda e: firstpos[e[0]])
    def pop():
        t, pi, c = pend[0]
        gs = tile_dma(t, cur, cfg)
        if pi is not None and c == 0: out.append(pi)
        out.extend(gs[c])
        if c + 1 == len(gs): pend.pop(0)
        else: pend[0] = (t, pi, c + 1)
    for i, ins in enumerate(prog):
        while pend and dl[pend[0][0]] <= i: pop()
        if ins.kind == 'marker' and ins.tag.startswith('flush'):
            while pend: pop()
        if ins.kind == 'marker' and ins.tag.startswith('cur'):
            while pend: pop()
            cur = int(ins.tag[3:])
        if ins.kind == 'barrier' and ins.tag is not None:
            nb += 1
            out.append(waittag(vm=need[nb] + (ins.extra or []), lg=free[nb]))
            out.append(ins)
            for t in issue[nb]: push(t)
            continue
        if ins.kind == 'dsr' and ins.tag is not None and ins.tag[0] == 'X' and ins.tag not in seenx:
            seenx.add(ins.tag); out.append(waittag(vm=[ins.tag]))
        out.append(ins)
        if ins.kind == 'mfma':
            while xq and i >= lastpos[xprev[xq[0]]] + 6:
                t = xq.pop(0); push(t, waittag(lg=[xprev[t]]))
            if pend:
                cnt += 1
                if cnt % cfg.dma_gap == 0: pop()
    while pend: pop()
    assert not xq
    if cfg.verbose:
        for t in sorted(first, key=lambda t: firstpos[t]): print(t, 'issue', issue_at.get(t), 'first', first[t], 'last', last[t])
    return pre, out, late

def qk(sem, F, it, j, buf, usem):
    for kt in range(2):
        for t in range(4):
            fr = F.next()
            sem.append(lds_read("ds_read_b128", fr, 4, ('K', it, j), t, kt * 4096))
            for qt in range(3):
                d = S_(buf, kt, qt)
                c = d if t > 0 else (NM(qt) if usem else None)
                sem.append(mfma16(d, fr, Q_(qt, t), c))

def softmax(sem, buf, addm):
    for qt in range(3):
        for kt in range(2):
            for p in range(2):
                for e in range(2):
                    r = S_(buf, kt, qt) + p * 2 + e
                    if addm: sem.append(valu(f"v_add_f32 v{r}, v{NM(qt)}, v{r}", [r, NM(qt)], [r]))
                    sem.append(trans(f"v_exp_f32 v{r}, v{r}", [r], [r]))
                r = S_(buf, kt, qt) + p * 2
                d = S_(buf, 0, qt) + kt * 2 + p
                sem.append(valu(f"v_cvt_pk_bf16_f32 v{d}, v{r}, v{r+1}", [r, r + 1], [d]))

def pv(sem, F, it, j, buf):
    first = (j == 0)
    for qt in range(3):
        sem.append(mfma16(L_(qt), ONES, S_(buf, 0, qt), None if first else L_(qt)))
    for s in range(8):
        fr = F.next()
        for h in range(2): sem.append(lds_read("ds_read_b64_tr_b16", fr + 2 * h, 2, ('V', it, j), s, h * 4096))
        for qt in range(3):
            sem.append(mfma16(O_(s, qt), fr, S_(buf, 0, qt), None if first else O_(s, qt)))

def xlane_max(sem, r, tmp):
    sem.append(valu(f"v_mov_b32 v{tmp}, v{r}", [r], [tmp]))
    sem.append(perm(f"v_permlane32_swap_b32 v{r}, v{tmp}", [r, tmp]))
    sem.append(valu(f"v_max_f32 v{r}, v{r}, v{tmp}", [r, tmp], [r]))
    sem.append(valu(f"v_mov_b32 v{tmp}, v{r}", [r], [tmp]))
    sem.append(perm(f"v_permlane16_swap_b32 v{r}, v{tmp}", [r, tmp]))
    sem.append(valu(f"v_max_f32 v{r}, v{r}, v{tmp}", [r, tmp], [r]))

def set_negm(sem, qt, src):
    n = NM(qt)
    sem.append(valu(f"v_sub_f32 v{n}, 0, v{src}", [src], [n]))
    for e in range(1, 4): sem.append(valu(f"v_mov_b32 v{n+e}, v{n}", [n], [n + e]))

def first_max(sem, buf):
    for qt in range(3):
        m = NM(qt) + 1; a = S_(buf, 0, qt); b = S_(buf, 1, qt)
        sem.append(valu(f"v_max3_f32 v{m}, v{a}, v{a+1}, v{a+2}", [a, a + 1, a + 2], [m]))
        sem.append(valu(f"v_max3_f32 v{m}, v{m}, v{a+3}, v{b}", [m, a + 3, b], [m]))
        sem.append(valu(f"v_max3_f32 v{m}, v{m}, v{b+1}, v{b+2}", [m, b + 1, b + 2], [m]))
        sem.append(valu(f"v_max_f32 v{m}, v{m}, v{b+3}", [m, b + 3], [m]))
    for qt in range(3): xlane_max(sem, NM(qt) + 1, NM(qt) + 2)
    for qt in range(3): set_negm(sem, qt, NM(qt) + 1)

def attention(sem, it, preset, hook=None):
    F = Rot(FR, NFR); bufs = [XB, YB]
    sem.append(barrier(0))
    qk(sem, F, it, 0, bufs[0], preset)
    qk(sem, F, it, 1, bufs[1], preset)
    if not preset: first_max(sem, bufs[0])
    for j in range(16):
        softmax(sem, bufs[j % 2], (not preset) and j < 2)
        if j < 15:
            b = barrier(0); sem.append(b)
        if hook: hook(sem, j, b)
        pv(sem, F, it, j, bufs[j % 2])
        if j + 2 < 16: qk(sem, F, it, j + 2, bufs[j % 2], True)

def epilogue_norm(sem):
    for qt in range(3):
        l = L_(qt)
        sem.append(trans(f"v_rcp_f32 v{l+2}, v{l}", [l], [l + 2]))
        sem.append(valu(f"v_mov_b32 v{l+3}, v{l+2}", [l + 2], [l + 3]))
    for t in range(4):
        for qt in range(3):
            l = L_(qt)
            a = O_(2 * t, qt); b = O_(2 * t + 1, qt)
            for r in (a, a + 2, b, b + 2):
                sem.append(valu(f"v_pk_mul_f32 {R(r,2)}, {R(r,2)}, {R(l+2,2)}", [r, r + 1, l + 2, l + 3], [r, r + 1]))
            sem.append(valu(f"v_cvt_pk_bf16_f32 v{a}, v{a}, v{a+1}", [a, a + 1], [a]))
            sem.append(valu(f"v_cvt_pk_bf16_f32 v{a+1}, v{a+2}, v{a+3}", [a + 2, a + 3], [a + 1]))
            sem.append(valu(f"v_cvt_pk_bf16_f32 v{a+2}, v{b}, v{b+1}", [b, b + 1], [a + 2]))
            sem.append(valu(f"v_cvt_pk_bf16_f32 v{a+3}, v{b+2}, v{b+3}", [b + 2, b + 3], [a + 3]))

def o_stores(p, tag):
    T = TA
    lane_id(p, T)
    p.append(salu(f"s_lshr_b32 s{S_TMP}, s{S_OFF}, 5"))
    p.append(salu(f"s_add_u32 s{S_TMP}, s{S_TMP}, s{S_OB}"))
    p.append(valu(f"v_lshl_add_u32 v{T}, v{T}, 4, s{S_TMP}", [T], [T]))
    for qt in range(3):
        so = ['0', f"s{S_C1}", f"s{S_C2}"][qt]
        for t in range(4):
            a = O_(2 * t, qt)
            p.append(vstore(f"buffer_store_dwordx4 {R(a,4)}, v{T}, s[{S_O}:{S_O+3}], {so} offen offset:{t*1024} sc1", rng(a, 4) + [T], tag=tag))

def q_addr(p, T, item_expr_sgpr):
    lane_id(p, T)
    p.append(salu(f"s_mul_i32 s{S_TMP}, s{item_expr_sgpr}, 49152"))
    p.append(salu(f"s_mul_i32 s{S_CNT}, s{S_W}, 12288"))
    p.append(salu(f"s_add_u32 s{S_TMP}, s{S_TMP}, s{S_CNT}"))
    p.append(valu(f"v_lshl_add_u32 v{T}, v{T}, 4, s{S_TMP}", [T], [T]))

def q_io(p, T, store, tag=None):
    for qt in range(3):
        p.append(salu(f"s_movk_i32 s{S_TMP}, {qt*4096}", swr=['stmp']))
        for t in range(4):
            q = Q_(qt, t)
            if store: i = vstore(f"buffer_store_dwordx4 {R(q,4)}, v{T}, s[{S_Q}:{S_Q+3}], s{S_TMP} offen offset:{t*1024} sc1", rng(q, 4) + [T], tag=tag)
            else: i = vload(f"buffer_load_dwordx4 {R(q,4)}, v{T}, s[{S_Q}:{S_Q+3}], s{S_TMP} offen offset:{t*1024} sc1", [T], rng(q, 4), tag=tag)
            p.append(i)

def att_addrs(p, tmp):
    a, b, c, d = tmp, tmp + 1, tmp + 2, tmp + 3
    V = lambda t, rd, wr: p.append(valu(t, rd, wr))
    lane_id(p, a)
    V(f"v_and_b32 v{b}, 15, v{a}", [a], [b])
    V(f"v_lshrrev_b32 v{c}, 4, v{a}", [a], [c])
    V(f"v_xor_b32 v{d}, v{b}, v{c}", [b, c], [d])
    V(f"v_lshlrev_b32 v{d}, 4, v{d}", [d], [d])
    V(f"v_lshl_add_u32 v{KAD}, v{b}, 8, v{d}", [b, d], [KAD])
    for t in range(1, 4): V(f"v_xor_b32 v{KAD+t}, {t*64}, v{KAD}", [KAD], [KAD + t])
    V(f"v_lshrrev_b32 v{b}, 2, v{a}", [a], [b])
    V(f"v_and_b32 v{c}, 3, v{a}", [a], [c])
    V(f"v_lshlrev_b32 v{c}, 3, v{c}", [c], [c])
    V(f"v_lshl_add_u32 v{c}, v{b}, 8, v{c}", [b, c], [c])
    V(f"v_and_b32 v{d}, 7, v{b}", [b], [d])
    V(f"v_lshl_add_u32 v{VAD}, v{d}, 5, v{c}", [d, c], [VAD])
    for s in range(1, 8): V(f"v_xor_b32 v{VAD+s}, {s*32}, v{VAD}", [VAD], [VAD + s])
    for e in range(4): V(f"v_mov_b32 v{ONES+e}, 0x3f803f80", [], [ONES + e])

def qp_addrs(p, tmp):
    a, b, c, d, e = range(tmp, tmp + 5)
    V = lambda t, rd, wr: p.append(valu(t, rd, wr))
    lane_id(p, e)
    V(f"v_and_b32 v{b}, 15, v{e}", [e], [b])
    V(f"v_lshrrev_b32 v{d}, 4, v{e}", [e], [d])
    V(f"v_lshrrev_b32 v{c}, 1, v{b}", [b], [c])
    V(f"v_xor_b32 v{c}, v{c}, v{d}", [c, d], [c])
    V(f"v_lshlrev_b32 v{c}, 4, v{c}", [c], [c])
    V(f"v_lshl_add_u32 v{c}, v{b}, 7, v{c}", [b, c], [c])
    V(f"v_add_u32 v{XAD}, s{S_XBASE}, v{c}", [c], [XAD])
    V(f"v_xor_b32 v{XAD+1}, 64, v{XAD}", [XAD], [XAD + 1])
    V(f"v_lshrrev_b32 v{a}, 2, v{e}", [e], [a])
    V(f"v_and_b32 v{a}, 3, v{a}", [a], [a])
    V(f"v_lshl_add_u32 v{b}, v{d}, 3, v{a}", [d, a], [b])
    V(f"v_and_b32 v{c}, 1, v{d}", [d], [c])
    V(f"v_lshl_add_u32 v{c}, v{c}, 2, v{a}", [c, a], [c])
    V(f"v_lshlrev_b32 v{c}, 5, v{c}", [c], [c])
    V(f"v_lshl_add_u32 v{c}, v{b}, 8, v{c}", [b, c], [c])
    V(f"v_and_b32 v{e}, 3, v{e}", [e], [e])
    V(f"v_lshl_add_u32 v{c}, v{e}, 3, v{c}", [e, c], [c])
    V(f"v_add_u32 v{WAD}, {WBASE}, v{c}", [c], [WAD])
    for T in range(1, 8): V(f"v_xor_b32 v{WAD+T}, {T*32}, v{WAD}", [WAD], [WAD + T])

def qproj(sem, cfg, it):
    F = Rot(FR, NFR)
    XPOS = [0, 0, 0, 1] + [cfg.xpos0 + 16 * (i // 4) + (i % 4) for i in range(23)]
    for k in range(18):
        if k % 2 == 0: sem.append(barrier(0))
        for T in range(8):
            G = k * 8 + T
            for n in range(27):
                if XPOS[n] == G:
                    for kk in range(2): sem.append(lds_read("ds_read_b128", XFr(2 * (n // 3) + kk, n % 3), 4, ('X', it, n), kk, 0))
            fr = F.next()
            for h in range(2): sem.append(lds_read("ds_read_b64_tr_b16", fr + 2 * h, 2, ('W', it, k), T, h * 1024))
            for qt in range(3):
                sem.append(mfma16(O_(T, qt), fr, XFr(k, qt), None if k == 0 else O_(T, qt)))
    for t in range(4):
        for qt in range(3):
            a_ = O_(2 * t, qt); b_ = O_(2 * t + 1, qt); q = Q_(qt, t)
            for r in (a_, a_ + 2, b_, b_ + 2):
                sem.append(valu(f"v_pk_mul_f32 {R(r,2)}, {R(r,2)}, s[{S_SC}:{S_SC+1}]", [r, r + 1], [r, r + 1]))
            sem.append(valu(f"v_cvt_pk_bf16_f32 v{q}, v{a_}, v{a_+1}", [a_, a_ + 1], [q]))
            sem.append(valu(f"v_cvt_pk_bf16_f32 v{q+1}, v{a_+2}, v{a_+3}", [a_ + 2, a_ + 3], [q + 1]))
            sem.append(valu(f"v_cvt_pk_bf16_f32 v{q+2}, v{b_}, v{b_+1}", [b_, b_ + 1], [q + 2]))
            sem.append(valu(f"v_cvt_pk_bf16_f32 v{q+3}, v{b_+2}, v{b_+3}", [b_ + 2, b_ + 3], [q + 3]))
            for x in range(2): sem.append(perm(f"v_permlane32_swap_b32 v{q+x}, v{q+2+x}", [q + x, q + 2 + x]))
            for x in range(2): sem.append(perm(f"v_permlane16_swap_b32 v{q+x}, v{q+2+x}", [q + x, q + 2 + x]))

def warm_wq(p, t0, dst, soff):
    w0, w1, w2 = t0, t0 + 1, t0 + 2
    V = lambda t, rd, wr: p.append(valu(t, rd, wr))
    lane_id(p, w2)
    p.append(raw(f"s_and_b32 s72, s{S_GBI}, 3")); p.append(raw("s_lshl_b32 s72, s72, 2")); p.append(raw(f"s_add_u32 s72, s72, s{S_W}")); p.append(raw("s_mul_i32 s72, s72, 72"))
    for h in range(2):
        V(f"v_min_u32 v{w1}, 35, v{w2}", [w2], [w1])
        V(f"v_add_u32 v{w1}, s72, v{w1}", [w1], [w1])
        V(f"v_and_b32 v{w0}, 1, v{w1}", [w1], [w0])
        V(f"v_lshrrev_b32 v{w1}, 1, v{w1}", [w1], [w1])
        V(f"v_lshlrev_b32 v{w1}, 13, v{w1}", [w1], [w1])
        V(f"v_lshl_add_u32 v{w1}, v{w0}, 7, v{w1}", [w0, w1], [w1])
        p.append(vload(f"buffer_load_dword v{dst+h}, v{w1}, s[{S_WQ}:{S_WQ+3}], {soff} offen", [w1], [dst + h]))
        if h == 0: p.append(raw("s_add_u32 s72, s72, 36"))

def warm_wo(p, t0, dst, soff):
    w1, w2 = t0, t0 + 1
    V = lambda t, rd, wr: p.append(valu(t, rd, wr))
    lane_id(p, w2)
    p.append(raw(f"s_lshr_b32 s72, s{S_R}, 3")); p.append(raw("s_lshl_b32 s72, s72, 2")); p.append(raw(f"s_add_u32 s72, s72, s{S_W}")); p.append(raw("s_mul_i32 s72, s72, 72"))
    for h in range(2):
        V(f"v_min_u32 v{w1}, 35, v{w2}", [w2], [w1])
        V(f"v_add_u32 v{w1}, s72, v{w1}", [w1], [w1])
        V(f"v_lshlrev_b32 v{w1}, 7, v{w1}", [w1], [w1])
        p.append(vload(f"buffer_load_dword v{dst+h}, v{w1}, s[{S_WOW}:{S_WOW+3}], {soff} offen", [w1], [dst + h]))
        if h == 0: p.append(raw("s_add_u32 s72, s72, 36"))

def set_offs(p, cur, nxt, mul):
    p.append(raw(f"s_add_u32 s72, s{S_ITEM}, s{S_ROT}"))
    p.append(raw("s_and_b32 s73, s72, 3")); p.append(raw(f"s_mul_i32 s{cur}, s73, {mul}"))
    p.append(raw("s_add_u32 s72, s72, 1")); p.append(raw("s_and_b32 s73, s72, 3")); p.append(raw(f"s_mul_i32 s{nxt}, s73, {mul}"))
    p.append(raw(f"s_cmp_ge_u32 s{S_ITEM}, 3")); p.append(raw(f"s_cselect_b32 s{nxt}, 0x20000000, s{nxt}"))

def fence(): return marker('fence')

def signal(p, ta, tb, off_sgpr, val_sgpr, lab, atomic=False):
    p.append(raw(f"s_cmp_lg_u32 s{S_W}, 0"))
    p.append(raw(f"s_cbranch_scc1 {lab}"))
    p.append(valu(f"v_mov_b32 v{ta}, s{off_sgpr}", [], [ta]))
    p.append(valu(f"v_mov_b32 v{tb}, s{val_sgpr}", [], [tb]))
    p.append(raw("s_mov_b64 exec, 1"))
    if atomic: p.append(raw(f"global_atomic_add v{ta}, v{tb}, s[{S_DBG}:{S_DBG+1}] sc1"))
    else: p.append(raw(f"global_store_dword v{ta}, v{tb}, s[{S_FLG}:{S_FLG+1}] sc0 sc1"))
    p.append(raw("s_mov_b64 exec, -1"))
    p.append(label(lab))

def stampm(p, cfg, ta, tb):
    if not cfg.stamps: return
    p.append(I("s_memrealtime s[76:77]", 'stamp'))
    p.append(valu(f"v_mov_b32 v{ta}, s{S_SA}", [], [ta]))
    p.append(valu(f"v_mov_b32 v{tb}, s76", [], [tb]))
    p.append(raw(f"global_store_dword v{ta}, v{tb}, s[{S_WS}:{S_WS+1}]"))
    p.append(raw(f"s_add_u32 s{S_SA}, s{S_SA}, 4"))
    p.append(raw("s_nop 1"))

def spin(p, lab, back, ta, tb, base, off_sgpr, nl, need_sgpr, slp=16, first=True):
    p.append(label(lab))
    p.append(raw(f"s_mov_b32 s{S_SPIN}, 0"))
    if not first: p.append(raw(f"s_branch {lab}_f"))
    p.append(label(lab + "_l"))
    p.append(raw(f"s_sleep {slp}"))
    p.append(label(lab + "_f"))
    p.append(raw(f"v_mbcnt_lo_u32_b32 v{tb}, -1, 0"))
    p.append(raw(f"v_lshl_add_u32 v{tb}, v{tb}, 2, s{off_sgpr}"))
    p.append(raw(f"s_mov_b64 exec, {(1 << nl) - 1}"))
    p.append(raw(f"global_load_dword v{ta}, v{tb}, s[{base}:{base+1}] sc0 sc1"))
    p.append(raw("s_waitcnt vmcnt(0)"))
    p.append(raw(f"v_cmp_gt_u32 vcc, s{need_sgpr}, v{ta}"))
    p.append(raw("s_mov_b64 exec, -1"))
    p.append(raw(f"s_add_u32 s{S_SPIN}, s{S_SPIN}, 1"))
    p.append(raw("s_nop 3"))
    p.append(raw("s_cmp_eq_u64 vcc, 0"))
    p.append(raw(f"s_cbranch_scc1 {back}"))
    p.append(raw(f"s_cmp_lt_u32 s{S_SPIN}, 100000"))
    p.append(raw(f"s_cbranch_scc1 {lab}_l"))
    p.append(raw(f"s_branch {back}"))

def cut(prog, a, b):
    i = next(k for k, x in enumerate(prog) if x.kind == 'label' and x.text == a + ':')
    j = next(k for k, x in enumerate(prog) if x.kind == 'label' and x.text == b + ':')
    return prog[i + 1:j]

DROP = ['']
PF = ['sc0 sc1']
def finish(p):
    p = insert_waits(p)
    if DROP[0]:
        for i in p:
            if i.kind == 'dma' and i.tag and i.tag[0] in DROP[0]: i.text = 's_nop 0'
            if 'S' in DROP[0] and i.kind in ('vst', 'vld'): i.text = i.text.replace(' sc1', '') if 'sc0' not in i.text else i.text
            if 'B' in DROP[0] and i.kind == 'vld' and f's[{S_O}:' in i.text: i.text = 's_nop 0'
            if 's_cbranch_scc1 LA_fallback' in i.text: i.text = 's_nop 0'
    p, n = insert_nops(p); return p

def gen_A(cfg):
    P = []
    def sr(t): P.append(raw(t))
    V = lambda t, rd, wr: P.append(valu(t, rd, wr))
    def body(it):
        sem = []
        def hook(sem, j, bar):
            if j == 1:
                bar.extra = [('OST', it - 1)]
                L = [raw(f"s_lshl_b32 s73, s{S_M}, 2")]
                signal(L, TA, TB, 73, S_ITEM, "LA_sig")
                sem.extend([fence()] + L + [fence()])
            if j == 9:
                L = [valu(f"v_mov_b32 v{TB}, s{S_QDW}", [], [TB]),
                     raw("s_mov_b64 exec, 1"),
                     vload(f"global_load_dword v{TA}, v{TB}, s[{S_FLG}:{S_FLG+1}] sc0 sc1", [TB], [TA]),
                     raw("s_mov_b64 exec, -1")]
                sem.extend([fence()] + L + [fence()])
            if j == 14:
                L = [raw(f"s_add_u32 s74, s{S_ITEM}, 1"), raw("s_and_b32 s75, s74, 3"),
                     valu(f"v_readfirstlane_b32 s72, v{TA}", [TA], [], swr=['s72']),
                     raw("s_nop 3"),
                     raw("s_cmp_lt_u32 s72, s75"), raw("s_cbranch_scc1 LA_qspin"), label("LA_qback")]
                q_addr(L, TA, 74)
                q_io(L, TA, False)
                sem.extend([marker('flush'), fence()] + L + [fence()])
        attention(sem, it, False, hook)
        epilogue_norm(sem)
        M = [label(f"@b{it}"), marker(f'cur{it}')]
        stampm(M, cfg, TA, TB)
        M += schedule(sem, cfg.valu_rate, cfg.valu_burst)
        T0, T1 = FR + 4, FR + 5
        M.append(marker('flush'))
        M.append(valu(f"v_cmp_nge_f32 vcc, s{S_THR}, v{L_(0)}", [L_(0)], [], swr=['vcc']))
        M.append(valu(f"v_cmp_nge_f32 s[72:73], s{S_THR}, v{L_(1)}", [L_(1)], [], swr=['s72']))
        M.append(valu(f"v_cmp_nge_f32 s[74:75], s{S_THR}, v{L_(2)}", [L_(2)], [], swr=['s74']))
        M.append(raw("s_nop 4"))
        M.append(raw("s_or_b64 s[72:73], s[72:73], s[74:75]"))
        M.append(raw("s_or_b64 s[72:73], s[72:73], vcc"))
        M.append(raw("s_cmp_lg_u64 s[72:73], 0"))
        M.append(raw("s_cselect_b32 s72, 1, 0"))
        M.append(raw(f"s_lshl_b32 s73, s{S_W}, 2"))
        M.append(raw(f"s_add_u32 s73, s73, {FLAGLOC}"))
        M.append(valu(f"v_mov_b32 v{T0}, s73", [], [T0]))
        M.append(valu(f"v_mov_b32 v{T1}, s72", [], [T1]))
        M.append(ds_write(f"ds_write_b32 v{T0}, v{T1}", [T0, T1]))
        M.append(valu(f"v_mov_b32 v{T0}, {FLAGLOC}", [], [T0]))
        M.append(waitall(vm=False))
        M.append(barrier(0))
        M.append(ds_read(f"ds_read_b128 {R(FR,4)}, v{T0}", T0, rng(FR, 4)))
        M.append(valu(f"v_or3_b32 v{FR}, v{FR}, v{FR+1}, v{FR+2}", [FR, FR + 1, FR + 2], [FR]))
        M.append(valu(f"v_or_b32 v{FR}, v{FR}, v{FR+3}", [FR, FR + 3], [FR]))
        M.append(valu(f"v_readfirstlane_b32 s72, v{FR}", [FR], [], swr=['s72']))
        M.append(raw("s_nop 3"))
        M.append(raw("s_cmp_lg_u32 s72, 0"))
        M.append(raw("s_cbranch_scc1 LA_fallback"))
        M.append(marker('flush'))
        o_stores(M, ('OST', it))
        M.append(label("LA_after"))
        M.append(raw(f"s_add_u32 s{S_ITEM}, s{S_ITEM}, 1"))
        set_offs(M, S_OFF, S_OFFN, 0x100000)
        M.append(raw(f"s_cmp_lt_u32 s{S_ITEM}, 4"))
        M.append(raw("s_cbranch_scc1 LA_loop"))
        return M
    virt = body(0) + body(1) + body(2) + [label("@b3")]
    depth = {'K': cfg.kvdepth, 'V': cfg.kvdepth}
    pre, virt, late = place_tiles(virt, cfg, depth=depth)
    vp = []
    for t in pre:
        for g in tile_dma(t, 0, cfg): vp.extend(g)
    virt = finish(vp + virt)
    loop = cut(virt, "@b1", "@b2")
    tpre = list(dict.fromkeys(i.tag for i in loop if i.kind == 'dma' and i.tag[1] == 2))
    if cfg.verbose: print("A tpre", tpre)
    sem = []
    qproj(sem, cfg, 0)
    att_addrs(sem, NEGM)
    sch = [marker('cur0')] + schedule(sem, cfg.valu_rate, cfg.valu_burst)
    extra = [(k, 0, i) for (k, _, i) in tpre]
    pre, qp, late = place_tiles(sch, cfg, extra=extra)
    lane_id(P, TA)
    V(f"v_lshlrev_b32 v{TA}, 7, v{TA}", [TA], [TA])
    V(f"v_lshl_add_u32 v{TA}, s{S_M}, 2, v{TA}", [TA], [TA])
    V(f"v_mov_b32 v{TB}, 0", [], [TB])
    sr(f"s_cmp_lg_u32 s{S_W}, 0"); sr("s_cbranch_scc1 LA_z")
    sr("s_mov_b64 exec, 3")
    sr(f"global_store_dword v{TA}, v{TB}, s[{S_FLG}:{S_FLG+1}] sc0 sc1")
    sr("s_mov_b64 exec, -1")
    P.append(label("LA_z"))
    set_offs(P, S_OFF, S_OFFN, 0x100000)
    set_offs(P, S_OFF2, S_OFF2N, 2048)
    for t in pre:
        for g in tile_dma(t, 0, cfg): P.extend(g)
    a, b, c, d = FR, FR + 1, FR + 2, FR + 3
    if cfg.warm:
        w0, w1 = ACC, ACC + 1
        lane_id(P, w1)
        sr(f"s_lshl_b32 s72, s{S_M}, 2"); sr(f"s_add_u32 s72, s72, s{S_W}"); sr("s_mul_i32 s72, s72, 54")
        V(f"v_min_u32 v{w0}, 53, v{w1}", [w1], [w0])
        V(f"v_add_u32 v{w0}, s72, v{w0}", [w0], [w0])
        V(f"v_lshlrev_b32 v{w0}, 7, v{w0}", [w0], [w0])
        P.append(vload(f"buffer_load_dword v{NEGM+8}, v{w0}, s[{S_X}:{S_X+3}], 0 offen", [w0], [NEGM + 8]))
        warm_wq(P, ACC + 4, NEGM + 9, f's{S_OFF2}')
    sr(f"s_and_b32 s72, s{S_GBI}, 15"); sr("s_lshl_b32 s72, s72, 5"); sr(f"s_add_u32 s72, s72, s{S_M}"); sr("s_lshl_b32 s72, s72, 17")
    sr(f"s_add_u32 s{S_K}, s10, s72"); sr(f"s_addc_u32 s{S_K+1}, s11, 0")
    sr(f"s_mov_b32 s{S_K+2}, {3*1048576+131072}"); sr(f"s_mov_b32 s{S_K+3}, 0x20000")
    sr(f"s_add_u32 s{S_V}, s12, s72"); sr(f"s_addc_u32 s{S_V+1}, s13, 0")
    sr(f"s_mov_b32 s{S_V+2}, {3*1048576+131072}"); sr(f"s_mov_b32 s{S_V+3}, 0x20000")
    sr(f"s_mul_i32 s{S_OB}, s{S_W}, {3*131072}"); sr(f"s_lshl_b32 s72, s{S_M}, 12"); sr(f"s_add_u32 s{S_OB}, s{S_OB}, s72")
    sr(f"s_mov_b32 s{S_THR}, 0x{f32bits(2.0**40):x}")
    lane_id(P, b)
    V(f"v_lshrrev_b32 v{a}, 4, v{b}", [b], [a])
    V(f"v_lshl_add_u32 v{a}, s{S_W}, 2, v{a}", [a], [a])
    V(f"v_and_b32 v{b}, 15, v{b}", [b], [b])
    V(f"v_xor_b32 v{c}, v{a}, v{b}", [a, b], [c])
    V(f"v_lshlrev_b32 v{c}, 4, v{c}", [c], [c])
    V(f"v_lshl_add_u32 v{VOK}, v{a}, 8, v{c}", [a, c], [VOK])
    V(f"v_and_b32 v{c}, 7, v{a}", [a], [c])
    V(f"v_lshlrev_b32 v{c}, 1, v{c}", [c], [c])
    V(f"v_xor_b32 v{c}, v{c}, v{b}", [c, b], [c])
    V(f"v_lshlrev_b32 v{c}, 4, v{c}", [c], [c])
    V(f"v_lshl_add_u32 v{VOV}, v{a}, 8, v{c}", [a, c], [VOV])
    qp_addrs(P, FR + 8)
    if cfg.prio_a: sr(f"s_setprio {cfg.prio_a}")
    k2 = [k for k, x in enumerate(qp) if x.kind == 'barrier'][1]
    L = [raw(f"s_lshl_b32 s73, s{S_GBI}, 2"), raw("s_mov_b32 s72, 1")]
    signal(L, TA, TB, 73, 72, "LA_ini", atomic=True)
    qp = qp[:k2 + 1] + L + qp[k2 + 1:]
    P.extend(qp)
    if late:
        P.append(waitall(vm=False)); P.append(barrier())
        for t in late:
            for g in tile_dma(t, 0, cfg): P.extend(g)
    q_addr(P, TA, S_ITEM)
    q_io(P, TA, True)
    P.append(waitall())
    sr("s_nop 7")
    P = finish(P)
    P.append(label("LA_loop"))
    P.extend(loop)
    E = []
    E.append(waitall()); E.append(barrier())
    E.append(raw(f"s_lshl_b32 s73, s{S_M}, 2"))
    signal(E, TA, TB, 73, S_ITEM, "LA_sig2")
    stampm(E, cfg, TA, TB)
    E.append(raw("s_endpgm"))
    spin(E, "LA_qspin", "LA_qback", TA, TB, S_FLG, S_QDW, 1, 75, slp=cfg.aslp)
    E.append(label("LA_fallback"))
    E.append(waitall()); E.append(raw("s_nop 7"))
    q_addr(E, TA, S_ITEM); q_io(E, TA, False)
    VE = lambda t, rd, wr: E.append(valu(t, rd, wr))
    for qt in range(3): VE(f"v_mov_b32 v{NM(qt)+1}, 0xff800000", [], [NM(qt) + 1])
    E.append(raw(f"s_mov_b32 s{S_CNT}, 0"))
    E.append(label("LA_fb_loop"))
    E.append(waitall()); E.append(barrier())
    for c_ in range(2):
        E.append(salu(f"s_add_u32 m0, s{S_W1024}, {c_*4096}", swr=['m0']))
        E.append(salu(f"s_add_u32 s{S_TMP}, s{S_CNT}, {c_*4096}"))
        E.append(salu(f"s_add_u32 s{S_TMP}, s{S_TMP}, s{S_OFF}"))
        E.append(dma(f"buffer_load_dwordx4 v{VOK}, s[{S_K}:{S_K+3}], s{S_TMP} offen lds", [VOK]))
    E.append(waitall()); E.append(barrier())
    for kt in range(2):
        for t in range(4):
            fr = ACC + (kt * 4 + t) * 4
            E.append(ds_read(f"ds_read_b128 {R(fr,4)}, v{KAD+t} offset:{kt*4096}", KAD + t, rng(fr, 4)))
    for kt in range(2):
        for t in range(4):
            fr = ACC + (kt * 4 + t) * 4
            for qt in range(3):
                d_ = S_(XB, kt, qt)
                E.append(mfma16(d_, fr, Q_(qt, t), d_ if t else None))
    for qt in range(3):
        m = NM(qt) + 1
        for kt in range(2):
            a_ = S_(XB, kt, qt)
            VE(f"v_max3_f32 v{m}, v{m}, v{a_}, v{a_+1}", [m, a_, a_ + 1], [m])
            VE(f"v_max3_f32 v{m}, v{m}, v{a_+2}, v{a_+3}", [m, a_ + 2, a_ + 3], [m])
    E.append(raw("s_nop 7"))
    E.append(raw(f"s_add_u32 s{S_CNT}, s{S_CNT}, 8192"))
    E.append(raw(f"s_cmp_lt_u32 s{S_CNT}, 131072"))
    E.append(raw("s_cbranch_scc1 LA_fb_loop"))
    for qt in range(3): xlane_max(E, NM(qt) + 1, NM(qt) + 2)
    for qt in range(3): set_negm(E, qt, NM(qt) + 1)
    E.append(waitall()); E.append(barrier())
    sem = []
    attention(sem, 0, True); epilogue_norm(sem)
    pre2, fb, _ = place_tiles([marker('cur0')] + schedule(sem, cfg.valu_rate, cfg.valu_burst), cfg)
    for t in pre2:
        for g in tile_dma(t, 0, cfg): E.extend(g)
    E.extend(fb)
    o_stores(E, None)
    E.append(waitall()); E.append(barrier())
    for (k, _, i) in tpre:
        for g in tile_dma((k, 1, i), 0, cfg): E.extend(g)
    E.append(raw(f"s_add_u32 s74, s{S_ITEM}, 1"))
    q_addr(E, TA, 74); q_io(E, TA, False)
    E.append(waitall()); E.append(raw("s_nop 7"))
    E.append(raw("s_branch LA_after"))
    return P + finish(E)

def gen_G(cfg):
    P = []
    def sr(t): P.append(raw(t))
    V = lambda t, rd, wr: P.append(valu(t, rd, wr))
    T0, T1 = 0, 1
    def qbody(it):
        sem = []
        qproj(sem, cfg, it)
        M = [label(f"@q{it}"), marker(f'cur{it}')]
        stampm(M, cfg, T0, T1)
        if cfg.warm:
            M.append(raw(f"s_mul_i32 s73, s{S_ROT}, {1024*1152}"))
            M.append(raw(f"s_cmp_eq_u32 s{S_ITEM}, 3"))
            M.append(raw("s_cbranch_scc1 LG_w1"))
            W1 = []; warm_wq(W1, NEGM, NEGM + 4, f's{S_OFF2N}')
            for w in W1:
                M.append(raw(w.text)); M.append(raw("s_nop 0"))
            M.append(raw("s_branch LG_w2")); M.append(label("LG_w1"))
            W1 = []; warm_wo(W1, NEGM, NEGM + 4, 's73')
            for w in W1:
                M.append(raw(w.text)); M.append(raw("s_nop 0"))
            M.append(label("LG_w2"))
        M += schedule(sem, cfg.valu_rate, cfg.valu_burst)
        M.append(marker('flush'))
        q_addr(M, T0, S_ITEM)
        q_io(M, T0, True, tag=('QST', it))
        b = barrier(0); b.extra = [('QST', it)]
        M.append(b)
        M.append(raw(f"s_or_b32 s72, s{S_W}, s{S_QSH}"))
        M.append(raw("s_cmp_eq_u32 s72, 0")); M.append(raw("s_cbranch_scc1 LG_ispin")); M.append(label("LG_iback"))
        M.append(raw(f"s_mov_b32 s{S_QSH}, 1"))
        signal(M, T0, T1, S_QDW, S_ITEM, "LG_sig")
        M.append(marker('flush'))
        M.append(raw(f"s_add_u32 s{S_ITEM}, s{S_ITEM}, 1"))
        set_offs(M, S_OFF2, S_OFF2N, 2048)
        M.append(raw(f"s_cmp_lt_u32 s{S_ITEM}, 4"))
        M.append(raw("s_cbranch_scc1 LG_qloop"))
        return M
    virt = qbody(0) + qbody(1) + qbody(2) + [label("@q3")]
    pre, virt, late = place_tiles(virt, cfg)
    vp = []
    for t in pre:
        for g in tile_dma(t, 0, cfg): vp.extend(g)
    virt = finish(vp + virt)
    qloop = cut(virt, "@q1", "@q2")
    tpre = list(dict.fromkeys(i.tag for i in qloop if i.kind == 'dma' and i.tag[1] == 2))
    if cfg.verbose: print("G tpre", tpre)
    sr(f"s_mov_b32 s{S_ITEM}, 1"); set_offs(P, S_OFF2, S_OFF2N, 2048)
    sr(f"s_mov_b32 s{S_QSH}, 0"); sr(f"s_lshl_b32 s74, s{S_GBI}, 2"); sr("s_mov_b32 s75, 8")
    for _ in range(cfg.gdelay): sr("s_sleep 64")
    sr(f"s_cmp_lt_u32 s{S_GBI}, 16"); sr(f"s_cselect_b64 s[{S_WOW}:{S_WOW+1}], s[24:25], s[34:35]")
    sr(f"s_mov_b32 s{S_WOW+2}, {4096*1152}"); sr(f"s_mov_b32 s{S_WOW+3}, 0x20000")
    for (k, _, i) in tpre:
        for g in tile_dma((k, 0, i), 0, cfg): P.extend(g)
    if cfg.warm: warm_wq(P, NEGM, NEGM + 4, f"s{S_OFF2}")
    qp_addrs(P, FR + 8)
    if cfg.prio_g: sr(f"s_setprio {cfg.prio_g}")
    P.append(waitall()); sr("s_nop 7")
    P = finish(P)
    P.append(label("LG_qloop")); P.extend(qloop)
    E = []
    def se(t): E.append(raw(t))
    VE = lambda t, rd, wr: E.append(valu(t, rd, wr))
    E.append(waitall()); E.append(barrier())
    se(f"s_lshr_b32 s{S_KH}, s{S_W}, 1"); se(f"s_and_b32 s{S_QH}, s{S_W}, 1")
    se("s_load_dwordx2 s[8:9], s[0:1], 32"); se("s_load_dwordx4 s[12:15], s[0:1], 72")
    se(f"s_and_b32 s72, s{S_M}, 3"); se("s_mul_i32 s72, s72, 288")
    se(f"s_mul_i32 s73, s{S_KH}, {512*1152}"); se("s_add_u32 s73, s73, s72")
    se("s_waitcnt lgkmcnt(0)")
    se(f"s_cmp_lt_u32 s{S_GBI}, 16"); se("s_cselect_b64 s[8:9], s[8:9], s[12:13]")
    se(f"s_add_u32 s{S_WO}, s8, s73"); se(f"s_addc_u32 s{S_WO+1}, s9, 0")
    se(f"s_sub_u32 s{S_WO+2}, {4096*1152}, s73"); se(f"s_mov_b32 s{S_WO+3}, 0x20000")
    se(f"s_and_b32 s73, s{S_GBI}, 15"); se("s_mul_i32 s73, s73, 192")
    se(f"s_lshr_b32 s74, s{S_M}, 2"); se("s_mul_i32 s75, s74, 96"); se("s_add_u32 s73, s73, s75")
    se(f"s_mul_i32 s75, s{S_QH}, 48"); se("s_add_u32 s73, s73, s75"); se("s_mul_i32 s73, s73, 2304")
    se(f"s_lshr_b32 s75, s{S_GBI}, 4"); se("s_mul_i32 s75, s75, 1152"); se("s_add_u32 s73, s73, s75"); se("s_add_u32 s73, s73, s72")
    se(f"s_add_u32 s{S_OUT}, s14, s73"); se(f"s_addc_u32 s{S_OUT+1}, s15, 0")
    se(f"s_mov_b32 s{S_OUT+2}, {47*2304+288}"); se(f"s_mov_b32 s{S_OUT+3}, 0x20000")
    se(f"s_mul_i32 s{S_XBASE}, s{S_KH}, {4*OSL}")
    se(f"s_lshl_b32 s{S_W1024}, s{S_QH}, 10"); se(f"s_add_u32 s{S_W1024}, s{S_W1024}, s{S_XBASE}")
    LN, a, b, c = 11, 12, 13, 14
    lane_id(E, LN)
    se("s_movk_i32 s75, 3641"); se(f"s_lshl_b32 s73, s{S_QH}, 6")
    for cc in range(5):
        VE(f"v_add_u32 v{a}, s73, v{LN}", [LN], [a])
        if cc: VE(f"v_add_u32 v{a}, {128*cc}, v{a}", [a], [a])
        VE(f"v_mul_u32_u24 v{b}, s75, v{a}", [a], [b])
        VE(f"v_lshrrev_b32 v{b}, 16, v{b}", [b], [b])
        VE(f"v_mul_u32_u24 v{c}, 18, v{b}", [b], [c])
        VE(f"v_sub_u32 v{c}, v{a}, v{c}", [a, c], [c])
        VE(f"v_mul_u32_u24 v{b}, 1152, v{b}", [b], [b])
        VE(f"v_lshl_add_u32 v{VOD+cc}, v{c}, 4, v{b}", [c, b], [VOD + cc])
    se(f"s_mul_i32 s73, s{S_QH}, 0x40000000")
    VE(f"v_add_u32 v{VOD+4}, s73, v{VOD+4}", [VOD + 4], [VOD + 4])
    VE(f"v_lshrrev_b32 v{a}, 2, v{LN}", [LN], [a])
    VE(f"v_mul_u32_u24 v{a}, 288, v{a}", [a], [a])
    VE(f"v_and_b32 v{b}, 3, v{LN}", [LN], [b])
    VE(f"v_lshl_add_u32 v{a}, v{b}, 3, v{a}", [b, a], [a])
    VE(f"v_add_u32 v{AAD}, s{S_XBASE}, v{a}", [a], [AAD])
    se(f"s_mul_i32 s{S_OB}, s74, {6*131072}"); se(f"s_mul_i32 s73, s{S_QH}, {3*131072}"); se(f"s_add_u32 s{S_OB}, s{S_OB}, s73")
    se(f"s_lshl_b32 s73, s{S_KH}, 14"); se(f"s_add_u32 s{S_OB}, s{S_OB}, s73")
    for r in range(OACC, 256): VE(f"v_mov_b32 v{r}, 0", [], [r])
    se(f"s_mov_b32 s{S_ITEM}, 0")
    set_offs(E, S_OFF, S_OFFN, 1024 * 1152)
    set_offs(E, S_OFF2, S_OFF2N, 32768)
    se(f"s_mov_b32 s{S_QDW}, 0"); se("s_mov_b32 s75, 1")
    def obody(it):
        M = [label(f"@o{it}"), marker(f'cur{it}')]
        stampm(M, cfg, T0, T1)
        if cfg.warm:
            warm_wo(M, 12, 14, f's{S_OFFN}')
        M.append(raw(f"s_cmp_eq_u32 s{S_W}, 0"))
        M.append(raw("s_cbranch_scc1 LG_ospin")); M.append(label("LG_oback"))
        M.append(barrier())
        stampm(M, cfg, T0, T1)
        M.append(raw(f"s_add_u32 s72, s{S_OB}, s{S_OFF2}"))
        M.append(valu(f"v_lshl_add_u32 v{VOB}, v{LN}, 4, s72", [LN], [VOB]))
        sem = []; F = Rot(GFR, NGFR)
        def bl(u):
            if u and u % 4 == 0: sem.append(valu(f"v_add_u32 v{VOB}, 4096, v{VOB}", [VOB], [VOB]))
            for qt in range(3):
                so = ['0', f"s{S_C1}", f"s{S_C2}"][qt]
                sem.append(vload(f"buffer_load_dwordx4 {R(B_(u,qt),4)}, v{VOB}, s[{S_O}:{S_O+3}], {so} offen offset:{(u%4)*1024} sc1", [VOB], rng(B_(u, qt), 4)))
        for u in range(NBS): bl(u)
        for u in range(16):
            sem.append(barrier(0))
            if u >= NBS: bl(u)
            for nu in range(9):
                fr = F.next()
                for h in range(2): sem.append(lds_read("ds_read_b64_tr_b16", fr + 2 * h, 2, ('P', it, u), 0, h * 4608 + nu * 32))
                for qt in range(3): sem.append(mfma16(OA(nu, qt), fr, B_(u, qt), OA(nu, qt)))
        M += schedule(sem)
        M.append(marker('flush'))
        M.append(raw(f"s_add_u32 s{S_ITEM}, s{S_ITEM}, 1"))
        set_offs(M, S_OFF, S_OFFN, 1024 * 1152)
        set_offs(M, S_OFF2, S_OFF2N, 32768)
        M.append(raw("s_add_u32 s75, s75, 1"))
        M.append(raw(f"s_cmp_lt_u32 s{S_ITEM}, 4"))
        M.append(raw("s_cbranch_scc1 LG_oloop"))
        return M
    virt = obody(0) + obody(1) + obody(2) + [label("@o3")]
    pre, virt, late = place_tiles(virt, cfg)
    vp = []
    for t in pre:
        for g in tile_dma(t, 0, cfg): vp.extend(g)
    virt = finish(vp + virt)
    oloop = cut(virt, "@o1", "@o2")
    tpre = list(dict.fromkeys(i.tag for i in oloop if i.kind == 'dma' and i.tag[1] == 2))
    if cfg.verbose: print("G O tpre", tpre)
    for (k, _, i) in tpre:
        for g in tile_dma((k, 0, i), 0, cfg): E.extend(g)
    se("s_nop 7")
    P += finish(E)
    P.append(label("LG_oloop")); P.extend(oloop)
    E = []
    E.append(waitall()); E.append(raw("s_nop 7")); E.append(barrier())
    wa, ra, oa = 12, 13, 14
    se(f"s_mul_i32 s72, s{S_W}, {14*1024}"); se(f"s_xor_b32 s73, s{S_W}, 2"); se(f"s_mul_i32 s73, s73, {14*1024}")
    VE(f"v_lshl_add_u32 v{wa}, v{LN}, 4, s72", [LN], [wa])
    VE(f"v_lshl_add_u32 v{ra}, v{LN}, 4, s73", [LN], [ra])
    VE(f"v_and_b32 v{oa}, 15, v{LN}", [LN], [oa])
    VE(f"v_mul_u32_u24 v{oa}, 2304, v{oa}", [oa], [oa])
    VE(f"v_lshrrev_b32 v{15}, 4, v{LN}", [LN], [15])
    VE(f"v_lshl_add_u32 v{oa}, v{15}, 3, v{oa}", [15, oa], [oa])
    se(f"s_cmp_lg_u32 s{S_KH}, 0"); se("s_cbranch_scc1 LG_red1")
    tiles = [(nu, qt) for qt in range(3) for nu in range(9)]
    for kh in range(2):
        own = tiles[:14] if kh == 0 else tiles[14:]
        oth = tiles[14:] if kh == 0 else tiles[:14]
        if kh: E.append(label("LG_red1"))
        for n, (nu, qt) in enumerate(oth):
            E.append(ds_write(f"ds_write_b128 v{wa}, {R(OA(nu,qt),4)} offset:{n*1024}", rng(OA(nu, qt), 4) + [wa]))
        E.append(waitall(vm=False)); E.append(barrier())
        for n, (nu, qt) in enumerate(own):
            E.append(ds_read(f"ds_read_b128 {R(BST+4*n,4)}, v{ra} offset:{n*1024}", ra, rng(BST + 4 * n, 4)))
        for n, (nu, qt) in enumerate(own):
            x = OA(nu, qt); y = BST + 4 * n
            for e in (0, 2): VE(f"v_pk_add_f32 {R(x+e,2)}, {R(x+e,2)}, {R(y+e,2)}", [x + e, x + e + 1, y + e, y + e + 1], [x + e, x + e + 1])
            VE(f"v_cvt_pk_bf16_f32 v{x}, v{x}, v{x+1}", [x, x + 1], [x])
            VE(f"v_cvt_pk_bf16_f32 v{x+1}, v{x+2}, v{x+3}", [x + 2, x + 3], [x + 1])
            se(f"s_mov_b32 s72, {qt*16*2304}")
            E.append(vstore(f"buffer_store_dwordx2 {R(x,2)}, v{oa}, s[{S_OUT}:{S_OUT+3}], s72 offen offset:{nu*32}", [x, x + 1, oa], wide=False))
        stampm(E, cfg, T0, T1)
        se("s_endpgm")
        E.append(waitall())
    spin(E, "LG_ospin", "LG_oback", T0, T1, S_FLG, S_QDW, 8, 75, slp=cfg.gslp, first=False)
    spin(E, "LG_ispin", "LG_iback", T0, T1, S_DBG, 74, 1, 75, slp=64, first=False)
    return P + finish(E)

def gen(cfg):
    DROP[0] = cfg.drop; PF[0] = cfg.pf
    P = []
    def sr(t): P.append(raw(t))
    V = lambda t, rd, wr: P.append(valu(t, rd, wr))
    sr("s_cmp_ge_u32 s2, 512")
    sr("s_cbranch_scc1 L_end")
    sr("s_load_dwordx16 s[16:31], s[0:1], 0")
    sr("s_load_dwordx4 s[32:35], s[0:1], 64")
    sr(f"s_load_dwordx2 s[{S_DBG}:{S_DBG+1}], s[0:1], 88")
    sr(f"s_load_dwordx2 s[{S_WS}:{S_WS+1}], s[0:1], 96")
    LANE = FR + 8
    V(f"v_lshrrev_b32 v{FR}, 6, v0", [0], [FR])
    V(f"v_and_b32 v{LANE}, 63, v0", [0], [LANE])
    P.append(valu(f"v_readfirstlane_b32 s{S_W}, v{FR}", [FR], [], swr=[f"s{S_W}"]))
    if cfg.samecu:
        sr("s_bfe_u32 s3, s2, 0x10003"); sr("s_bfe_u32 s4, s2, 0x10008")
        sr("s_and_b32 s2, s2, 0xf7"); sr("s_lshl_b32 s3, s3, 8"); sr("s_lshl_b32 s4, s4, 3")
        sr("s_or_b32 s2, s2, s3"); sr("s_or_b32 s2, s2, s4")
    sr(f"s_and_b32 s{S_R}, s2, 255")
    sr(f"s_and_b32 s3, s{S_R}, 7"); sr(f"s_lshr_b32 s4, s{S_R}, 3")
    sr(f"s_and_b32 s{S_M}, s4, 7")
    sr("s_lshr_b32 s5, s4, 3"); sr(f"s_lshl_b32 s{S_GBI}, s3, 2"); sr(f"s_add_u32 s{S_GBI}, s{S_GBI}, s5")
    sr(f"s_lshl_b32 s{S_QDW}, s{S_M}, 2"); sr(f"s_add_u32 s{S_QDW}, s{S_QDW}, 128")
    sr(f"s_lshl_b32 s{S_W1024}, s{S_W}, 10"); sr(f"s_lshl_b32 s{S_XBASE}, s{S_W}, 13")
    sr(f"s_mov_b32 s{S_ITEM}, 0"); sr(f"s_and_b32 s{S_ROT}, s3, 3")
    sr(f"s_mov_b32 s{S_C1}, 131072"); sr(f"s_mov_b32 s{S_C2}, 262144")
    sc = f32bits(math.log2(math.e) / math.sqrt(128.0))
    sr(f"s_mov_b32 s{S_SC}, 0x{sc:x}"); sr(f"s_mov_b32 s{S_SC+1}, 0x{sc:x}")
    if cfg.stamps:
        sr("s_lshl_b32 s72, s2, 2"); sr(f"s_add_u32 s72, s72, s{S_W}"); sr("s_lshl_b32 s72, s72, 6"); sr(f"s_add_u32 s{S_SA}, s72, 0x7000000")
    sr("s_waitcnt lgkmcnt(0)")
    sr(f"s_cmp_lt_u32 s{S_GBI}, 16")
    sr("s_cselect_b64 s[8:9], s[16:17], s[26:27]")
    sr("s_cselect_b64 s[10:11], s[18:19], s[28:29]")
    sr("s_cselect_b64 s[12:13], s[20:21], s[30:31]")
    sr("s_cselect_b64 s[14:15], s[22:23], s[32:33]")
    sr(f"s_and_b32 s72, s{S_GBI}, 15"); sr("s_mul_i32 s72, s72, 221184")
    sr(f"s_add_u32 s{S_X}, s8, s72"); sr(f"s_addc_u32 s{S_X+1}, s9, 0")
    sr(f"s_mov_b32 s{S_X+2}, 221184"); sr(f"s_mov_b32 s{S_X+3}, 0x20000")
    sr(f"s_lshl_b32 s72, s{S_M}, 8")
    sr(f"s_add_u32 s{S_WQ}, s14, s72"); sr(f"s_addc_u32 s{S_WQ+1}, s15, 0")
    sr(f"s_sub_u32 s{S_WQ+2}, {576*8192}, s72"); sr(f"s_mov_b32 s{S_WQ+3}, 0x20000")
    sr(f"s_mul_i32 s72, s{S_GBI}, 1572864")
    sr(f"s_add_u32 s{S_O}, s{S_WS}, s72"); sr(f"s_addc_u32 s{S_O+1}, s{S_WS+1}, 0")
    sr(f"s_mov_b32 s{S_O+2}, 1572864"); sr(f"s_mov_b32 s{S_O+3}, 0x20000")
    sr(f"s_mul_i32 s72, s{S_R}, 196608"); sr(f"s_add_u32 s72, s72, {QWS}")
    sr(f"s_add_u32 s{S_Q}, s{S_WS}, s72"); sr(f"s_addc_u32 s{S_Q+1}, s{S_WS+1}, 0")
    sr(f"s_mov_b32 s{S_Q+2}, 196608"); sr(f"s_mov_b32 s{S_Q+3}, 0x20000")
    sr(f"s_lshl_b32 s72, s{S_GBI}, 8"); sr(f"s_add_u32 s72, s72, {FLGWS}")
    sr(f"s_add_u32 s{S_FLG}, s{S_WS}, s72"); sr(f"s_addc_u32 s{S_FLG+1}, s{S_WS+1}, 0")
    a, b, c, d, e = FR, FR + 1, FR + 2, FR + 3, FR + 4
    V(f"v_lshrrev_b32 v{d}, 4, v{LANE}", [LANE], [d])
    V(f"v_lshl_add_u32 v{a}, s{S_W}, 2, v{d}", [d], [a])
    V(f"v_and_b32 v{b}, 15, v{LANE}", [LANE], [b])
    V(f"v_and_b32 v{c}, 3, v{a}", [a], [c])
    V(f"v_lshrrev_b32 v{e}, 3, v{a}", [a], [e])
    V(f"v_lshl_add_u32 v{c}, v{e}, 2, v{c}", [e, c], [c])
    V(f"v_lshlrev_b32 v{c}, 1, v{c}", [c], [c])
    V(f"v_xor_b32 v{c}, v{c}, v{b}", [c, b], [c])
    V(f"v_lshlrev_b32 v{c}, 4, v{c}", [c], [c])
    V(f"v_lshl_add_u32 v{VOW}, v{a}, 13, v{c}", [a, c], [VOW])
    sr(f"s_mul_i32 s72, s{S_W}, 48")
    V(f"v_lshrrev_b32 v{c}, 3, v{LANE}", [LANE], [c])
    V(f"v_add_u32 v{c}, s72, v{c}", [c], [c])
    V(f"v_mul_u32_u24 v{c}, 1152, v{c}", [c], [c])
    V(f"v_and_b32 v{e}, 7, v{LANE}", [LANE], [e])
    V(f"v_xor_b32 v{e}, v{e}, v{d}", [e, d], [e])
    V(f"v_lshl_add_u32 v{VOX}, v{e}, 4, v{c}", [e, c], [VOX])
    V(f"v_xor_b32 v{VOX2}, 64, v{VOX}", [VOX], [VOX2])
    stampm(P, cfg, 0, 1)
    sr("s_cmp_ge_u32 s2, 256")
    sr("s_cbranch_scc1 L_G")
    P = finish(P)
    P += gen_A(cfg)
    P.append(label("L_G"))
    P += gen_G(cfg)
    P.append(label("L_end")); P.append(raw("s_endpgm"))
    return P

if __name__ == "__main__":
    import sys
    NAME = "concat_heads__mha_block_cached__mha_block_cached__near_ridge"
    cfg = Cfg(); path = f"cdna_kernels/{NAME}.s"
    for a in sys.argv[1:]:
        if a.startswith("out="): path = a[4:]; continue
        k, v = a.split("=", 1)
        try: v = eval(v)
        except Exception: pass
        setattr(cfg, k, v)
    ref = open(f"cdna_kernels/{NAME}.s.ref").read()
    head = []
    for line in ref.splitlines():
        if not line.startswith(';'): break
        if '@launch' not in line: head.append(line)
    P = gen(cfg)
    nm = NAME + "_kernel"
    s = "\n".join(head) + "\n; @launch grid=(512,1,1) block=(256,1,1) lds=81920\n"
    s += '.amdgcn_target "amdgcn-amd-amdhsa--gfx950"\n.text\n'
    s += f".globl {nm}\n.p2align 8\n.type {nm},@function\n{nm}:\n" + render(P)
    s += f""".section .rodata,"a"
.p2align 6
.amdhsa_kernel {nm}
  .amdhsa_next_free_vgpr 256
  .amdhsa_next_free_sgpr 100
  .amdhsa_accum_offset 256
  .amdhsa_group_segment_fixed_size 0
  .amdhsa_kernarg_size 104
  .amdhsa_user_sgpr_count 2
  .amdhsa_user_sgpr_kernarg_segment_ptr 1
  .amdhsa_system_sgpr_workgroup_id_x 1
.end_amdhsa_kernel
"""
    open(path, "w").write(s)
    print("instrs", len(P), "bytes", len(s))
```

```python
from asmlib import *
import math, struct
from mega import (f32bits, ACC, O_, QB, Q_, XB, YB, S_, NEGM, NM, LB, L_, ONES, FR, NFR, KAD, VAD, XF, Rot, lane_id,
                  softmax, xlane_max, set_negm, first_max, fence)
NXF = 4
def XFr(k, qt): return XF + (k % NXF) * 12 + qt * 4

class Cfg:
    valu_rate = 1.3
    valu_burst = 2
    kv_flags = " nt"
    stamps = False
    warm = True
    dma_gap = 2
    xpos0 = 5
    kvdepth = 3
    drop = ''
    verbose = False
    types = 1
    gslp = 8
    fine = False
    qst = (16, 19)
    ost = (12, 15)

VOW, VOX, VOV, VOK = 0, 1, 2, 3
WAD = 4; XAD = 12; WAD2 = 44
SLOT = 8192; RINGB = 40960; REG = 81920; GR = 1024
OACC = 148
def OA(nu, qt): return OACC + (nu * 3 + qt) * 4
VOD = 52; AAD = 57; VOB = 58; LN = 59
BST = 60; NBS = 4
def B_(u, qt): return BST + (u % NBS) * 12 + qt * 4
GFR = 16; NGFR = 5
OSL = 10240
TA, TB = 40, 41
ODST = {'Q': [QB + 4 * i for i in range(12)], 'A': [O_(2 * t, qt) for qt in range(3) for t in range(4)],
        'O': [116 + 4 * i for i in range(8)] + [36, 4, 8, 12]}

S_X, S_WQ, S_K, S_V, S_O, S_Q, S_WO, S_OUT, S_WOW, S_PK = 40, 44, 48, 52, 56, 80, 16, 20, 24, 28
S_W = 60; S_W1024 = 61; S_W8 = 62; S_GB = 63
S_C1, S_C2 = 64, 65
S_TMP = 66; S_THR = 67; S_SC = 68; S_CNT = 70; S_M = 71
S_DBG = 84; S_GBI = 86; S_RET = 87; S_P1024 = 88; S_OBA = 89
S_WS = 90; S_SA = 92; S_SPIN = 93; S_OBG = 94; S_KOFF = 95; S_FLG = 96; S_NEED = 98; S_ITEM = 99; S_PB = 32; S_K4 = 33; S_K8 = 34; S_WOFF = 35
QWS = 0x3200000; FLGWS = 0x6400000; PKWS = 0x8000000

def tile_dma(tile, loc, cfg):
    kind, it, i = tile
    out = []
    if kind == 'P':
        for c in range(5):
            out.append([salu(f"s_add_u32 m0, s{S_P1024}, {loc + c * 2048}", swr=['m0']),
                        salu(f"s_mov_b32 s{S_TMP}, {(it * 2048 + i * 32) * 1152}"),
                        dma(f"buffer_load_dwordx4 v{VOD+c}, s[{S_WO}:{S_WO+3}], s{S_TMP} offen lds", [VOD + c], tag=tile)])
        return out
    for c in range(3 if kind == 'X' else 2):
        mv = None
        if kind == 'X': goff = c * 32 * 1152 + i * 128; srd = S_X; vo = VOX; fl = ""
        elif kind == 'W':
            goff = (i * 32 + c * 16) * 8192; srd = S_WQ; vo = VOW; fl = ""
            if it == 9: mv = salu(f"s_add_u32 s{S_TMP}, s{S_WOFF}, {goff}")
            else: goff += it * 4096
        else:
            goff = i * 8192 + c * 4096; srd = S_K if kind == 'K' else S_V; vo = VOK if kind == 'K' else VOV; fl = cfg.kv_flags
            if it == 9: mv = salu(f"s_add_u32 s{S_TMP}, s{S_KOFF}, {goff}")
            else: goff += it * 16 * 131072
        out.append([salu(f"s_add_u32 m0, s{S_W1024}, {loc + c * 4096}", swr=['m0']),
                    mv or salu(f"s_mov_b32 s{S_TMP}, {goff}"),
                    dma(f"buffer_load_dwordx4 v{vo}, s[{srd}:{srd+3}], s{S_TMP} offen{fl} lds", [vo], tag=tile)])
    return out

def lds_read(op, dst, n, tile, sel, inner):
    ad = {'K': KAD, 'V': VAD, 'W': WAD, 'X': XAD, 'P': AAD}[tile[0]] + sel
    return I('?', 'dsr', [ad] + ([WAD2 + sel] if tile[0] == 'W' else []), rng(dst, n), tag=tile, extra=(op, dst, n, ad, inner))

def resolve(ins, loc):
    op, dst, n, ad, inner = ins.extra
    off = loc - RINGB if ins.tag[0] in 'VW' else loc
    if off < 0: off = loc; ad = ad - WAD + WAD2
    ins.text = f"{op} {R(dst, n)}, v{ad} offset:{off + inner}"

def granules(kind, l):
    size = {'K': SLOT, 'V': SLOT, 'W': SLOT, 'X': 12288, 'F': 1024, 'P': OSL, 'R': REG}[kind]
    g = list(range(l // GR, (l + size) // GR))
    if kind == 'P': g += [x + RINGB // GR for x in g]
    return g
CAND = {'K': [i * SLOT for i in range(5)], 'V': [RINGB + i * SLOT for i in range(5)], 'W': [RINGB + i * SLOT for i in range(5)] + [3 * SLOT, 4 * SLOT],
        'X': [0, 12288], 'F': [i * 4096 for i in range(10)], 'P': [i * OSL for i in range(4)], 'R': [0]}

def place_tiles(prog, cfg, earliest=None):
    earliest = earliest or {}
    nb = -1; order = {}; last = {}; barpos = []; mark = {}
    for i, ins in enumerate(prog):
        if ins.kind == 'barrier' and ins.tag is not None: nb += 1; barpos.append(i)
        if ins.kind == 'marker': mark[ins.tag] = i
        if ins.kind in ('dsr', 'dsw') and ins.tag is not None:
            assert nb >= 0
            order.setdefault(ins.tag, (nb, i)); last[ins.tag] = nb
    first = {t: order[t][0] for t in order}
    nbar = nb + 1
    dl = {t: barpos[first[t]] for t in first}
    freeat = [-1] * 80
    loc = {}; issue_at = {}
    for t in sorted(first, key=lambda t: order[t]):
        kind = t[0]
        ft = lambda l: max(freeat[g] for g in granules(kind, l))
        cands = CAND[kind]
        if kind == 'X' and t[2] == 2: cands = [24576]
        if kind == 'W' and t[2] < 5: cands = cands[:5]
        l = min(cands, key=lambda l: (ft(l), cands.index(l)))
        f = ft(l)
        if kind in 'FR': assert f <= first[t], (t, f, first[t])
        else: assert f < first[t] or f == -1, (t, l, f, first[t])
        loc[t] = l
        if kind not in 'FR':
            issue_at[t] = max(f, first[t] - cfg.kvdepth) if kind in 'KV' else f
        for g in granules(kind, l): freeat[g] = last[t] + 1
    for ins in prog:
        if ins.kind == 'dsr' and ins.tag is not None and ins.tag[0] not in 'FR': resolve(ins, loc[ins.tag])
        if ins.kind in ('dsr', 'dsw') and ins.tag is not None and ins.tag[0] == 'F': ins.text = ins.text.replace('@F', str(loc[ins.tag]))
    need = [[] for _ in range(nbar)]; free = [[] for _ in range(nbar + 1)]
    for t in first:
        if t[0] not in 'FR': need[first[t]].append(t)
        free[last[t] + 1].append(t)
    issue = [[] for _ in range(nbar)]; pre = []
    for t in sorted(issue_at, key=lambda t: order[t]):
        if issue_at[t] < 0 and (t[0], t[1]) not in earliest: pre.extend(tile_dma(t, loc[t], cfg))
        else: issue[max(0, issue_at[t])].append(t)
    out = []; nb = -1; pend = []; cnt = 0; held = []
    def push(gs):
        pend.extend(gs); pend.sort(key=lambda g: order[g[-1].tag])
    ok = lambda t, i: earliest.get((t[0], t[1])) is None or i >= mark[earliest[(t[0], t[1])]]
    for i, ins in enumerate(prog):
        for t in [t for t in held if ok(t, i)]:
            held.remove(t); push(tile_dma(t, loc[t], cfg))
        while pend and dl[pend[0][-1].tag] <= i: out.extend(pend.pop(0))
        if ins.kind == 'marker' and ins.tag.startswith('flush'):
            while pend: out.extend(pend.pop(0))
        if ins.kind == 'barrier' and ins.tag is not None:
            nb += 1
            assert not any(t in need[nb] for t in held), held
            out.append(waittag(vm=need[nb] + (ins.extra or []), lg=free[nb]))
            out.append(ins)
            for t in issue[nb]:
                if ok(t, i): push(tile_dma(t, loc[t], cfg))
                else: held.append(t)
            continue
        out.append(ins)
        if ins.kind == 'mfma' and pend:
            cnt += 1
            if cnt % cfg.dma_gap == 0: out.extend(pend.pop(0))
    assert not pend and not held
    if cfg.verbose:
        for t in sorted(first, key=lambda t: order[t]): print(t, 'loc', loc[t] // GR, 'issue', issue_at.get(t), 'first', first[t], 'last', last[t])
    return pre, out, loc

def qk(sem, F, it, j, buf, usem):
    for kt in range(2):
        for t in range(4):
            fr = F.next()
            sem.append(lds_read("ds_read_b128", fr, 4, ('K', it, j), t, kt * 4096))
            for qt in range(3):
                d = S_(buf, kt, qt)
                sem.append(mfma16(d, fr, Q_(qt, t), d if t > 0 else (NM(qt) if usem else None)))

def pv(sem, F, it, j, buf):
    first = (j == 0)
    for qt in range(3): sem.append(mfma16(L_(qt), ONES, S_(buf, 0, qt), None if first else L_(qt)))
    for s in range(8):
        fr = F.next()
        for h in range(2): sem.append(lds_read("ds_read_b64_tr_b16", fr + 2 * h, 2, ('V', it, j), s, h * 4096))
        for qt in range(3): sem.append(mfma16(O_(s, qt), fr, S_(buf, 0, qt), None if first else O_(s, qt)))

def attention(sem, it, preset, hook=None):
    F = Rot(FR, NFR); bufs = [XB, YB]
    sem.append(barrier(0))
    qk(sem, F, it, 0, bufs[0], preset)
    qk(sem, F, it, 1, bufs[1], preset)
    if not preset: first_max(sem, bufs[0])
    for j in range(16):
        softmax(sem, bufs[j % 2], (not preset) and j < 2)
        if j < 15:
            b = barrier(0); sem.append(b)
        if hook: hook(sem, j, b)
        pv(sem, F, it, j, bufs[j % 2])
        if j + 2 < 16: qk(sem, F, it, j + 2, bufs[j % 2], True)

def qproj(sem, cfg, it, xid, hook=None):
    F = Rot(FR, NFR)
    XPOS = {}
    for stp in range(9):
        for qt in range(3): XPOS.setdefault(0 if stp == 0 else 16 * (stp - 1) + cfg.xpos0 + qt, []).append((stp, qt))
    for k in range(18):
        if k % 2 == 0:
            b = barrier(0); sem.append(b)
            if hook: hook(sem, k, b)
        for T in range(8):
            for (stp, qt) in XPOS.get(k * 8 + T, []):
                for kk in range(2): sem.append(lds_read("ds_read_b128", XFr(2 * stp + kk, qt), 4, ('X', xid, stp), kk, qt * 2048))
            fr = F.next()
            for h in range(2): sem.append(lds_read("ds_read_b64_tr_b16", fr + 2 * h, 2, ('W', it, k), T, h * 1024))
            for qt in range(3): sem.append(mfma16(O_(T, qt), fr, XFr(k, qt), None if k == 0 else O_(T, qt)))
    for t in range(4):
        for qt in range(3):
            a_ = O_(2 * t, qt); b_ = O_(2 * t + 1, qt); q = Q_(qt, t)
            for r in (a_, a_ + 2, b_, b_ + 2):
                sem.append(valu(f"v_pk_mul_f32 {R(r,2)}, {R(r,2)}, s[{S_SC}:{S_SC+1}]", [r, r + 1], [r, r + 1]))
            sem.append(valu(f"v_cvt_pk_bf16_f32 v{q}, v{a_}, v{a_+1}", [a_, a_ + 1], [q]))
            sem.append(valu(f"v_cvt_pk_bf16_f32 v{q+1}, v{a_+2}, v{a_+3}", [a_ + 2, a_ + 3], [q + 1]))
            sem.append(valu(f"v_cvt_pk_bf16_f32 v{q+2}, v{b_}, v{b_+1}", [b_, b_ + 1], [q + 2]))
            sem.append(valu(f"v_cvt_pk_bf16_f32 v{q+3}, v{b_+2}, v{b_+3}", [b_ + 2, b_ + 3], [q + 3]))
            for x in range(2): sem.append(perm(f"v_permlane32_swap_b32 v{q+x}, v{q+2+x}", [q + x, q + 2 + x]))
            for x in range(2): sem.append(perm(f"v_permlane16_swap_b32 v{q+x}, v{q+2+x}", [q + x, q + 2 + x]))

def epilogue_norm(sem, mode):
    D = ODST[mode]
    for qt in range(3):
        l = L_(qt)
        sem.append(trans(f"v_rcp_f32 v{l+2}, v{l}", [l], [l + 2]))
        sem.append(valu(f"v_mov_b32 v{l+3}, v{l+2}", [l + 2], [l + 3]))
    for t in range(4):
        for qt in range(3):
            l = L_(qt); d = D[frag_slot(mode, qt, t)]
            a = O_(2 * t, qt); b = O_(2 * t + 1, qt)
            for r in (a, a + 2, b, b + 2):
                sem.append(valu(f"v_pk_mul_f32 {R(r,2)}, {R(r,2)}, {R(l+2,2)}", [r, r + 1, l + 2, l + 3], [r, r + 1]))
            sem.append(valu(f"v_cvt_pk_bf16_f32 v{d}, v{a}, v{a+1}", [a, a + 1], [d]))
            sem.append(valu(f"v_cvt_pk_bf16_f32 v{d+1}, v{a+2}, v{a+3}", [a + 2, a + 3], [d + 1]))
            sem.append(valu(f"v_cvt_pk_bf16_f32 v{d+2}, v{b}, v{b+1}", [b, b + 1], [d + 2]))
            sem.append(valu(f"v_cvt_pk_bf16_f32 v{d+3}, v{b+2}, v{b+3}", [b + 2, b + 3], [d + 3]))
def frag_slot(mode, qt, t): return qt * 4 + t if mode != 'O' else t * 3 + qt

def o_addr(p, T, item):
    lane_id(p, T)
    p.append(raw(f"s_add_u32 s72, s{S_OBA}, {item*65536}"))
    p.append(valu(f"v_lshl_add_u32 v{T}, v{T}, 4, s72", [T], [T]))
def o_store_list(T, mode, tag):
    L = []
    for t in range(4):
        for qt in range(3):
            so = ['0', f"s{S_C1}", f"s{S_C2}"][qt]
            a = ODST[mode][frag_slot(mode, qt, t)]
            L.append(vstore(f"buffer_store_dwordx4 {R(a,4)}, v{T}, s[{S_O}:{S_O+3}], {so} offen offset:{t*1024} sc1", rng(a, 4) + [T], tag=tag))
    return L
def q_addr(p, T):
    lane_id(p, T)
    p.append(raw(f"s_mul_i32 s72, s{S_W8}, 12288"))
    p.append(valu(f"v_lshl_add_u32 v{T}, v{T}, 4, s72", [T], [T]))
def q_list(T, store):
    L = []
    for qt in range(3):
        so = ['0', f"s{S_K4}", f"s{S_K8}"][qt]
        for t in range(4):
            q = Q_(qt, t)
            if store: L.append(vstore(f"buffer_store_dwordx4 {R(q,4)}, v{T}, s[{S_Q}:{S_Q+3}], {so} offen offset:{t*1024}", rng(q, 4) + [T]))
            else: L.append(vload(f"buffer_load_dwordx4 {R(q,4)}, v{T}, s[{S_Q}:{S_Q+3}], {so} offen offset:{t*1024} sc1", [T], rng(q, 4)))
    return L
def sprinkle(sem, items, start, every):
    out = []; c = 0; items = list(items)
    for x in sem:
        out.append(x)
        if x.kind == 'mfma':
            c += 1
            if items and c >= start and (c - start) % every == 0: out.append(items.pop(0))
    assert not items
    sem[:] = out

def sprinkle_b(sem, items, pos, first=0):
    out = []; c = 0; nb = -1; items = list(items)
    for x in sem:
        out.append(x)
        if x.kind == 'barrier': c = 0; nb += 1
        if x.kind == 'mfma':
            c += 1
            if items and nb >= first and c in pos: out.append(items.pop(0))
    assert not items
    sem[:] = out

def dma_offs(p, tmp):
    a, b, c, d, e, LANE = range(tmp, tmp + 6)
    V = lambda t, rd, wr: p.append(valu(t, rd, wr))
    lane_id(p, LANE)
    V(f"v_lshrrev_b32 v{d}, 4, v{LANE}", [LANE], [d])
    V(f"v_lshl_add_u32 v{a}, s{S_W}, 2, v{d}", [d], [a])
    V(f"v_and_b32 v{b}, 15, v{LANE}", [LANE], [b])
    V(f"v_and_b32 v{c}, 3, v{a}", [a], [c])
    V(f"v_lshrrev_b32 v{e}, 3, v{a}", [a], [e])
    V(f"v_lshl_add_u32 v{c}, v{e}, 2, v{c}", [e, c], [c])
    V(f"v_lshlrev_b32 v{c}, 1, v{c}", [c], [c])
    V(f"v_xor_b32 v{c}, v{c}, v{b}", [c, b], [c])
    V(f"v_lshlrev_b32 v{c}, 4, v{c}", [c], [c])
    V(f"v_lshl_add_u32 v{VOW}, v{a}, 13, v{c}", [a, c], [VOW])
    for t in (f"s_lshr_b32 s73, s{S_W8}, 2", "s_mul_i32 s73, s73, 96", f"s_lshl_b32 s74, s{S_W}, 3", "s_add_u32 s73, s73, s74",
              f"s_and_b32 s74, s{S_W}, 1", "s_lshl_b32 s74, s74, 2"): p.append(raw(t))
    V(f"v_lshrrev_b32 v{c}, 3, v{LANE}", [LANE], [c])
    V(f"v_add_u32 v{c}, s73, v{c}", [c], [c])
    V(f"v_mul_u32_u24 v{c}, 1152, v{c}", [c], [c])
    V(f"v_and_b32 v{e}, 7, v{LANE}", [LANE], [e])
    V(f"v_xor_b32 v{e}, v{e}, v{d}", [e, d], [e])
    V(f"v_xor_b32 v{e}, s74, v{e}", [e], [e])
    V(f"v_lshl_add_u32 v{VOX}, v{e}, 4, v{c}", [e, c], [VOX])

def att_addrs(p, tmp):
    a, b, c, d = tmp, tmp + 1, tmp + 2, tmp + 3
    V = lambda t, rd, wr: p.append(valu(t, rd, wr))
    lane_id(p, a)
    V(f"v_and_b32 v{b}, 15, v{a}", [a], [b])
    V(f"v_lshrrev_b32 v{c}, 4, v{a}", [a], [c])
    V(f"v_xor_b32 v{d}, v{b}, v{c}", [b, c], [d])
    V(f"v_lshlrev_b32 v{d}, 4, v{d}", [d], [d])
    V(f"v_lshl_add_u32 v{d}, v{b}, 8, v{d}", [b, d], [d])
    V(f"v_add_u32 v{KAD}, s{S_GB}, v{d}", [d], [KAD])
    for t in range(1, 4): V(f"v_xor_b32 v{KAD+t}, {t*64}, v{KAD}", [KAD], [KAD + t])
    V(f"v_lshrrev_b32 v{b}, 2, v{a}", [a], [b])
    V(f"v_and_b32 v{c}, 3, v{a}", [a], [c])
    V(f"v_lshlrev_b32 v{c}, 3, v{c}", [c], [c])
    V(f"v_lshl_add_u32 v{c}, v{b}, 8, v{c}", [b, c], [c])
    V(f"v_and_b32 v{d}, 7, v{b}", [b], [d])
    V(f"v_lshl_add_u32 v{c}, v{d}, 5, v{c}", [d, c], [c])
    V(f"v_add_u32 v{c}, {RINGB}, v{c}", [c], [c])
    V(f"v_add_u32 v{VAD}, s{S_GB}, v{c}", [c], [VAD])
    for s in range(1, 8): V(f"v_xor_b32 v{VAD+s}, {s*32}, v{VAD}", [VAD], [VAD + s])
    for e in range(4): V(f"v_mov_b32 v{ONES+e}, 0x3f803f80", [], [ONES + e])

def qp_addrs(p, tmp):
    a, b, c, d, e = range(tmp, tmp + 5)
    V = lambda t, rd, wr: p.append(valu(t, rd, wr))
    lane_id(p, e)
    V(f"v_and_b32 v{b}, 15, v{e}", [e], [b])
    V(f"v_lshrrev_b32 v{d}, 4, v{e}", [e], [d])
    V(f"v_lshrrev_b32 v{c}, 1, v{b}", [b], [c])
    V(f"v_xor_b32 v{c}, v{c}, v{d}", [c, d], [c])
    V(f"v_lshlrev_b32 v{c}, 4, v{c}", [c], [c])
    V(f"v_lshl_add_u32 v{c}, v{b}, 7, v{c}", [b, c], [c])
    p.append(salu(f"s_lshr_b32 s{S_CNT}, s{S_W}, 1")); p.append(salu(f"s_mul_i32 s{S_CNT}, s{S_CNT}, {REG}"))
    p.append(salu(f"s_and_b32 s{S_TMP}, s{S_W}, 1")); p.append(salu(f"s_mul_i32 s{S_TMP}, s{S_TMP}, {48*128}"))
    p.append(salu(f"s_add_u32 s{S_CNT}, s{S_CNT}, s{S_TMP}"))
    V(f"v_add_u32 v{XAD}, s{S_CNT}, v{c}", [c], [XAD])
    V(f"v_xor_b32 v{XAD+1}, 64, v{XAD}", [XAD], [XAD + 1])
    V(f"v_lshrrev_b32 v{a}, 2, v{e}", [e], [a])
    V(f"v_and_b32 v{a}, 3, v{a}", [a], [a])
    V(f"v_lshl_add_u32 v{b}, v{d}, 3, v{a}", [d, a], [b])
    V(f"v_and_b32 v{c}, 1, v{d}", [d], [c])
    V(f"v_lshl_add_u32 v{c}, v{c}, 2, v{a}", [c, a], [c])
    V(f"v_lshlrev_b32 v{c}, 5, v{c}", [c], [c])
    V(f"v_lshl_add_u32 v{c}, v{b}, 8, v{c}", [b, c], [c])
    V(f"v_and_b32 v{e}, 3, v{e}", [e], [e])
    V(f"v_lshl_add_u32 v{c}, v{e}, 3, v{c}", [e, c], [c])
    V(f"v_add_u32 v{c}, {RINGB}, v{c}", [c], [c])
    V(f"v_add_u32 v{WAD}, s{S_GB}, v{c}", [c], [WAD])
    for T in range(1, 8): V(f"v_xor_b32 v{WAD+T}, {T*32}, v{WAD}", [WAD], [WAD + T])
    for T in range(8): V(f"v_subrev_u32 v{WAD2+T}, {RINGB}, v{WAD+T}", [WAD + T], [WAD2 + T])

def op_addrs(p):
    a, b, c = 60, 61, 62
    V = lambda t, rd, wr: p.append(valu(t, rd, wr))
    lane_id(p, LN)
    p.append(raw("s_movk_i32 s75, 3641")); p.append(raw(f"s_and_b32 s73, s{S_W}, 1")); p.append(raw("s_lshl_b32 s74, s73, 30")); p.append(raw("s_lshl_b32 s73, s73, 6"))
    for cc in range(5):
        V(f"v_add_u32 v{a}, s73, v{LN}", [LN], [a])
        if cc: V(f"v_add_u32 v{a}, {128*cc}, v{a}", [a], [a])
        V(f"v_mul_u32_u24 v{b}, s75, v{a}", [a], [b])
        V(f"v_lshrrev_b32 v{b}, 16, v{b}", [b], [b])
        V(f"v_mul_u32_u24 v{c}, 18, v{b}", [b], [c])
        V(f"v_sub_u32 v{c}, v{a}, v{c}", [a, c], [c])
        V(f"v_mul_u32_u24 v{b}, 1152, v{b}", [b], [b])
        V(f"v_lshl_add_u32 v{VOD+cc}, v{c}, 4, v{b}", [c, b], [VOD + cc])
    V(f"v_add_u32 v{VOD+4}, s74, v{VOD+4}", [VOD + 4], [VOD + 4])
    V(f"v_lshrrev_b32 v{a}, 2, v{LN}", [LN], [a])
    V(f"v_mul_u32_u24 v{a}, 288, v{a}", [a], [a])
    V(f"v_and_b32 v{b}, 3, v{LN}", [LN], [b])
    V(f"v_lshl_add_u32 v{a}, v{b}, 3, v{a}", [b, a], [a])
    V(f"v_add_u32 v{AAD}, s{S_PB}, v{a}", [a], [AAD])

def touch(p, t0, dst, srd, nshare_expr, per, soff, mode):
    w1, w2, w0 = t0, t0 + 1, t0 + 2
    V = lambda t, rd, wr: p.append(valu(t, rd, wr))
    lane_id(p, w2)
    for t in nshare_expr: p.append(raw(t))
    p.append(raw(f"s_mul_i32 s72, s72, {per}"))
    p.append(raw(f"s_mov_b32 s73, {soff}"))
    n = 1 if per <= 64 else 2
    h = per // n
    for i in range(n):
        V(f"v_min_u32 v{w1}, {h-1}, v{w2}", [w2], [w1])
        V(f"v_add_u32 v{w1}, s72, v{w1}", [w1], [w1])
        if mode == 'wq':
            V(f"v_and_b32 v{w0}, 1, v{w1}", [w1], [w0])
            V(f"v_lshrrev_b32 v{w1}, 1, v{w1}", [w1], [w1])
            V(f"v_lshlrev_b32 v{w1}, 13, v{w1}", [w1], [w1])
            V(f"v_lshl_add_u32 v{w1}, v{w0}, 7, v{w1}", [w0, w1], [w1])
        else: V(f"v_lshlrev_b32 v{w1}, 7, v{w1}", [w1], [w1])
        p.append(vload(f"buffer_load_dword v{dst+i}, v{w1}, s[{srd}:{srd+3}], s73 offen", [w1], [dst + i]))
        if i + 1 < n: p.append(raw(f"s_add_u32 s72, s72, {h}"))

def touch_wq(p, t0, dst, it):
    touch(p, t0, dst, S_WQ, [f"s_and_b32 s72, s{S_GBI}, 3", "s_lshl_b32 s72, s72, 2", f"s_add_u32 s72, s72, s{S_W}"], 72, it * 4096, 'wq')
def touch_wo(p, t0, dst, st, nsh):
    sh = ["s_lshr_b32 s72, s2, 3"] + (["s_lshr_b32 s72, s72, 1"] if nsh == 16 else []) + ["s_lshl_b32 s72, s72, 3", f"s_add_u32 s72, s72, s{S_W8}"]
    per = 18432 // (nsh * 8)
    for r in range(per // 72):
        touch(p, t0, dst + 2 * r, S_WOW, sh, 72, st * 2048 * 1152 + r * nsh * 8 * 72 * 128, 'lin')

def signal(p, ta, tb, val, lab, atomic=False):
    p.append(raw(f"s_cmp_lg_u32 s{S_W8}, 0")); p.append(raw(f"s_cbranch_scc1 {lab}"))
    p.append(raw(f"s_lshl_b32 s73, s{S_GBI if atomic else S_M}, 2"))
    p.append(valu(f"v_mov_b32 v{ta}, s73", [], [ta]))
    p.append(valu(f"v_mov_b32 v{tb}, {val}", [], [tb]))
    p.append(raw("s_mov_b64 exec, 1"))
    if atomic: p.append(raw(f"global_atomic_add v{ta}, v{tb}, s[{S_DBG}:{S_DBG+1}] sc1"))
    else: p.append(raw(f"global_store_dword v{ta}, v{tb}, s[{S_FLG}:{S_FLG+1}] sc0 sc1"))
    p.append(raw("s_mov_b64 exec, -1"))
    p.append(label(lab))

def poll(p, lab, ta, tb, base, off, nl, need, slp):
    for t in (f"s_mov_b32 s{S_SPIN}, 0", f"v_mbcnt_lo_u32_b32 v{tb}, -1, 0", f"v_lshl_add_u32 v{tb}, v{tb}, 2, {off}", f"s_mov_b64 exec, {(1 << nl) - 1}"): p.append(raw(t))
    p.append(label(lab + "_l"))
    for t in (f"global_load_dword v{ta}, v{tb}, s[{base}:{base+1}] sc0 sc1", "s_waitcnt vmcnt(0)", f"v_cmp_gt_u32 vcc, {need}, v{ta}",
              f"s_add_u32 s{S_SPIN}, s{S_SPIN}, 1", "s_nop 4", "s_cmp_eq_u64 vcc, 0", f"s_cbranch_scc1 {lab}_d",
              f"s_sleep {slp}", f"s_cmp_lt_u32 s{S_SPIN}, 100000", f"s_cbranch_scc1 {lab}_l"): p.append(raw(t))
    p.append(label(lab + "_d"))
    p.append(raw("s_mov_b64 exec, -1"))

def stampm(p, cfg, ta, tb):
    if not cfg.stamps: return
    p.append(I("s_memrealtime s[76:77]", 'stamp'))
    p.append(valu(f"v_mov_b32 v{ta}, s{S_SA}", [], [ta]))
    p.append(valu(f"v_mov_b32 v{tb}, s76", [], [tb]))
    p.append(raw(f"global_store_dword v{ta}, v{tb}, s[{S_WS}:{S_WS+1}]"))
    p.append(raw(f"s_add_u32 s{S_SA}, s{S_SA}, 4"))
    p.append(raw("s_nop 1"))

DROP = ['']
def finish(p):
    p = insert_waits(p)
    if DROP[0]:
        for i in p:
            if i.kind == 'dma' and i.tag and i.tag[0] in DROP[0]: i.text = 's_nop 0'
            if 'B' in DROP[0] and i.kind == 'vld' and f's[{S_O}:' in i.text: i.text = 's_nop 0'
            if 's_cbranch_scc1 L_fallback' in i.text: i.text = 's_nop 0'
    p, n = insert_nops(p); return p

def program(cfg, ty):
    seq = [('Q', 0), ('A', 0), ('Q', 1), ('A', 1), ('O', 0), ('O', 1)] if ty == 0 else [('Q', 1), ('Q', 0), ('A', 0), ('A', 1), ('O', 0), ('O', 1)]
    M = [marker('start')]
    earliest = {('K', 0): 'start', ('V', 0): 'start', ('K', 1): 'start', ('V', 1): 'start'}
    polled = False; resume = {}
    sch = lambda sem: schedule(sem, cfg.valu_rate, cfg.valu_burst)
    fx = lambda L: [fence()] + L + [fence()]
    def fstamp(sem, n, pos):
        if cfg.fine and cfg.fine[0] == n and pos in cfg.fine[1]:
            k_ = (8, 12, 36)[cfg.fine[1].index(pos)]
            sem.append(I(f"s_memtime s[{k_}:{k_+1}]", 'stamp')); sem.append(I(f"s_memrealtime s[{k_+2}:{k_+3}]", 'stamp'))
    for n, (ph, it) in enumerate(seq):
        nxt = seq[n + 1] if n + 1 < len(seq) else None
        prv = seq[n - 1] if n else None
        lab = f"L{ty}_{n}"
        if ph == 'Q':
            if prv and prv[0] != 'Q': qp_addrs(M, FR + 8)
            st = []
            if prv and prv[0] == 'A': o_addr(M, LB, prv[1]); st = o_store_list(LB, 'Q', ('OST', prv[1]))
            if prv and prv[0] == 'Q': q_addr(M, LB); st = q_list(LB, True)
            sem = []
            def hook(sem, k, b):
                fstamp(sem, n, k)
                if k == 2 and n == 0:
                    L = []; signal(L, NEGM + 4, NEGM + 5, 1, lab + "i", atomic=True); sem.extend(fx(L))
                if k == 14 and prv and prv[0] == 'A':
                    b.extra = [('OST', prv[1])]
                    L = []; signal(L, NEGM + 4, NEGM + 5, prv[1] + 1, lab + "s"); sem.extend(fx(L))
                if k == 8 and nxt[0] == 'Q' and cfg.warm:
                    L = []; touch_wq(L, NEGM, NEGM + 8, nxt[1]); sem.extend(fx(L))
            qproj(sem, cfg, it, n, hook)
            sprinkle_b(sem, st, cfg.qst)
            if nxt[0] == 'A': att_addrs(sem, NEGM)
            M += sch(sem)
            stampm(M, cfg, LB + 1, LB + 2)
        elif ph == 'A':
            st = []
            if prv[0] == 'A': o_addr(M, 0, prv[1]); st = o_store_list(0, 'A', ('OST', prv[1]))
            sem = []
            def hook(sem, j, b):
                fstamp(sem, n, j)
                if j == 3 and prv[0] == 'A':
                    b.extra = [('OST', prv[1])]
                    L = []; signal(L, 0, 1, prv[1] + 1, lab + "s"); sem.extend(fx(L))
                if j == 14:
                    L = []
                    if nxt[0] == 'Q' and cfg.warm: touch_wq(L, NEGM, NEGM + 8, nxt[1])
                    if nxt[0] == 'A': q_addr(L, 1); L += q_list(1, False)
                    if nxt[0] == 'O':
                        if cfg.warm: touch_wo(L, QB, 156, nxt[1], 32)
                        op_addrs(L)
                    sem.extend(fx(L) + [marker(f'pok{n}')])
            attention(sem, it, False, hook)
            sprinkle(sem, st, 2, 4)
            epilogue_norm(sem, nxt[0])
            M += sch(sem)
            if nxt[0] == 'O': earliest[('P', nxt[1])] = f'pok{n}'
            T0, T1 = FR + 4, FR + 5
            M.append(marker('flush'))
            M.append(valu(f"v_cmp_nge_f32 vcc, s{S_THR}, v{L_(0)}", [L_(0)], [], swr=['vcc']))
            M.append(valu(f"v_cmp_nge_f32 s[72:73], s{S_THR}, v{L_(1)}", [L_(1)], [], swr=['s72']))
            M.append(valu(f"v_cmp_nge_f32 s[74:75], s{S_THR}, v{L_(2)}", [L_(2)], [], swr=['s74']))
            for t in ("s_nop 4", "s_or_b64 s[72:73], s[72:73], s[74:75]", "s_or_b64 s[72:73], s[72:73], vcc", "s_cmp_lg_u64 s[72:73], 0",
                      "s_cselect_b32 s72, 1, 0", f"s_lshl_b32 s73, s{S_W8}, 2"): M.append(raw(t))
            M.append(valu(f"v_mov_b32 v{T0}, s73", [], [T0]))
            M.append(valu(f"v_mov_b32 v{T1}, s72", [], [T1]))
            M.append(I(f"ds_write_b32 v{T0}, v{T1} offset:@F", 'dsw', [T0, T1], tag=('F', n, 0)))
            lane_id(M, T0)
            M.append(valu(f"v_and_b32 v{T0}, 7, v{T0}", [T0], [T0]))
            M.append(valu(f"v_lshlrev_b32 v{T0}, 2, v{T0}", [T0], [T0]))
            M.append(waitall(vm=False))
            M.append(barrier(0))
            M.append(I(f"ds_read_b32 v{FR}, v{T0} offset:@F", 'dsr', [T0], [FR], tag=('F', n, 0)))
            M.append(valu(f"v_cmp_ne_u32 vcc, 0, v{FR}", [FR], [], swr=['vcc']))
            M.append(raw(f"s_mov_b32 s{S_RET}, {ty*2+it}")); M.append(raw(f"s_mov_b32 s{S_ITEM}, {it}"))
            M.append(raw("s_nop 3")); M.append(raw("s_cmp_lg_u64 vcc, 0")); M.append(raw("s_cbranch_scc1 L_fallback"))
            M.append(marker('flush'))
            M.append(label(f"L_after{ty*2+it}"))
            resume[ty * 2 + it] = nxt
            stampm(M, cfg, LB + 1, LB + 2)
        else:
            st = []
            if prv[0] == 'A': o_addr(M, TA + 4, prv[1]); st = o_store_list(TA + 4, 'O', ('OST', prv[1]))
            M.append(raw(f"s_cmp_lg_u32 s{S_W8}, 0")); M.append(raw(f"s_cbranch_scc1 {lab}w"))
            if not polled:
                M.append(raw(f"s_lshl_b32 s74, s{S_GBI}, 2"))
                poll(M, lab + "i", TA + 2, TB + 2, S_DBG, "s74", 1, 8, 64); polled = True
            poll(M, lab + "p", TA + 2, TB + 2, S_FLG, "0", 8, it + 1, cfg.gslp)
            M.append(label(lab + "w"))
            M.append(barrier())
            stampm(M, cfg, TA + 2, TB + 2)
            M.append(raw(f"s_add_u32 s72, s{S_OBG}, {it*65536}"))
            M.append(valu(f"v_lshl_add_u32 v{VOB}, v{LN}, 4, s72", [LN], [VOB]))
            sem = []; F = Rot(GFR, NGFR)
            def bl(u):
                if u and u % 4 == 0: sem.append(valu(f"v_add_u32 v{VOB}, 4096, v{VOB}", [VOB], [VOB]))
                for qt in range(3):
                    so = ['0', f"s{S_C1}", f"s{S_C2}"][qt]
                    sem.append(vload(f"buffer_load_dwordx4 {R(B_(u,qt),4)}, v{VOB}, s[{S_O}:{S_O+3}], {so} offen offset:{(u%4)*1024} sc1", [VOB], rng(B_(u, qt), 4)))
            for u in range(NBS): bl(u)
            for u in range(16):
                b = barrier(0); sem.append(b)
                fstamp(sem, n, u)
                if u == 9 and prv[0] == 'A':
                    b.extra = [('OST', prv[1])]
                    L = []; signal(L, TA, TB, prv[1] + 1, lab + "s"); sem.extend(fx(L))
                if u == 10 and nxt and cfg.warm:
                    L = []; touch_wo(L, 108, 112, 1, 32); sem.extend(fx(L))
                if u >= NBS: bl(u)
                for nu in range(9):
                    fr = F.next()
                    for h in range(2): sem.append(lds_read("ds_read_b64_tr_b16", fr + 2 * h, 2, ('P', it, u), 0, h * 4608 + nu * 32))
                    for qt in range(3): sem.append(mfma16(OA(nu, qt), fr, B_(u, qt), None if (it == 0 and u == 0) else OA(nu, qt)))
            sprinkle_b(sem, st, cfg.ost)
            M += schedule(sem)
            M.append(marker('flush'))
            stampm(M, cfg, TA, TB)
    if cfg.fine:
        M.append(raw("s_lshl_b32 s72, s2, 3")); M.append(raw(f"s_add_u32 s72, s72, s{S_W8}")); M.append(raw("s_lshl_b32 s72, s72, 6")); M.append(raw("s_add_u32 s72, s72, 0x7000028"))
        M.append(valu(f"v_mov_b32 v{LB+1}, s72", [], [LB + 1]))
        for q_, k_ in enumerate((8, 10, 12, 14, 36, 38)):
            M.append(valu(f"v_mov_b32 v{LB+2}, s{k_}", [], [LB + 2]))
            M.append(raw(f"global_store_dword v{LB+1}, v{LB+2}, s[{S_WS}:{S_WS+1}] offset:{4*q_}")); M.append(raw("s_nop 1"))
    M.append(raw("s_branch L_fin"))
    pre, M, loc = place_tiles(M, cfg, earliest)
    reissue = {}; cur = []
    done = set()
    for ins in M:
        if ins.kind == 'dma' and ins.tag not in cur: cur.append(ins.tag)
        if ins.kind == 'dsr' and ins.tag is not None: done.add(ins.tag)
        if ins.kind == 'label' and ins.text.startswith('L_after'):
            reissue[int(ins.text[7:-1])] = [(t, loc[t]) for t in cur if t not in done]
    return pre, M, reissue, resume

def gen(cfg):
    DROP[0] = cfg.drop
    P = []
    def sr(t): P.append(raw(t))
    V = lambda t, rd, wr: P.append(valu(t, rd, wr))
    sr("s_cmp_lt_u32 s2, 256"); sr("s_cbranch_scc1 L_go"); sr("s_endpgm"); P.append(label("L_go"))
    sr("s_load_dwordx16 s[16:31], s[0:1], 0")
    sr("s_load_dwordx8 s[32:39], s[0:1], 64")
    sr(f"s_load_dwordx2 s[{S_WS}:{S_WS+1}], s[0:1], 96")
    LANE = FR + 8
    V(f"v_lshrrev_b32 v{FR}, 6, v0", [0], [FR])
    V(f"v_and_b32 v{LANE}, 63, v0", [0], [LANE])
    P.append(valu(f"v_readfirstlane_b32 s{S_W8}, v{FR}", [FR], [], swr=[f"s{S_W8}"]))
    sr("s_and_b32 s3, s2, 7"); sr("s_lshr_b32 s4, s2, 3")
    sr(f"s_and_b32 s{S_M}, s4, 7")
    sr("s_lshr_b32 s5, s4, 3"); sr(f"s_lshl_b32 s{S_GBI}, s3, 2"); sr(f"s_add_u32 s{S_GBI}, s{S_GBI}, s5")
    sr(f"s_and_b32 s{S_W}, s{S_W8}, 3"); sr(f"s_lshr_b32 s6, s{S_W8}, 2")
    sr(f"s_lshl_b32 s7, s{S_M}, 1"); sr("s_add_u32 s7, s7, s6")
    sr(f"s_mul_i32 s{S_GB}, s6, {REG}")
    sr(f"s_lshl_b32 s{S_W1024}, s{S_W}, 10"); sr(f"s_add_u32 s{S_W1024}, s{S_W1024}, s{S_GB}")
    sr(f"s_mov_b32 s{S_C1}, 131072"); sr(f"s_mov_b32 s{S_C2}, 262144")
    if cfg.stamps:
        sr("s_lshl_b32 s72, s2, 3"); sr(f"s_add_u32 s72, s72, s{S_W8}"); sr("s_lshl_b32 s72, s72, 6"); sr(f"s_add_u32 s{S_SA}, s72, 0x7000000")
    sr("s_waitcnt lgkmcnt(0)")
    sr(f"s_cmp_lt_u32 s{S_GBI}, 16")
    sr("s_cselect_b64 s[8:9], s[16:17], s[26:27]")
    sr("s_cselect_b64 s[10:11], s[18:19], s[28:29]")
    sr("s_cselect_b64 s[12:13], s[20:21], s[30:31]")
    sr("s_cselect_b64 s[14:15], s[22:23], s[32:33]")
    sr(f"s_cselect_b64 s[{S_WOW}:{S_WOW+1}], s[24:25], s[34:35]")
    sr(f"s_mov_b64 s[{S_DBG}:{S_DBG+1}], s[38:39]")
    sr(f"s_and_b32 s5, s{S_GBI}, 15"); sr("s_mul_i32 s72, s5, 221184")
    sr(f"s_add_u32 s{S_X}, s8, s72"); sr(f"s_addc_u32 s{S_X+1}, s9, 0")
    sr(f"s_mov_b32 s{S_X+2}, 221184"); sr(f"s_mov_b32 s{S_X+3}, 0x20000")
    sr("s_lshl_b32 s72, s7, 8")
    sr(f"s_add_u32 s{S_WQ}, s14, s72"); sr(f"s_addc_u32 s{S_WQ+1}, s15, 0")
    sr(f"s_sub_u32 s{S_WQ+2}, {576*8192}, s72"); sr(f"s_mov_b32 s{S_WQ+3}, 0x20000")
    sr(f"s_lshl_b32 s72, s{S_GBI}, 8"); sr(f"s_add_u32 s72, s72, {FLGWS}")
    sr(f"s_add_u32 s{S_FLG}, s{S_WS}, s72"); sr(f"s_addc_u32 s{S_FLG+1}, s{S_WS+1}, 0")
    a, b, c, d, e = FR, FR + 1, FR + 2, FR + 3, FR + 4
    dma_offs(P, FR)
    signal(P, NEGM + 4, NEGM + 5, 0, "L_z")
    stampm(P, cfg, NEGM + 4, NEGM + 5)

    def rest(Pp, ty):
        def s(t): Pp.append(raw(t))
        VV = lambda t, rd, wr: Pp.append(valu(t, rd, wr))
        if cfg.warm:
            touch(Pp, ACC, NEGM + 8, S_X, [f"s_lshl_b32 s72, s{S_M}, 3", f"s_add_u32 s72, s72, s{S_W8}"], 27, 0, 'lin')
            touch_wq(Pp, ACC + 4, NEGM + 9, ty)
        s("s_lshl_b32 s72, s5, 5"); s("s_add_u32 s72, s72, s7"); s("s_lshl_b32 s72, s72, 17")
        s(f"s_add_u32 s{S_K}, s10, s72"); s(f"s_addc_u32 s{S_K+1}, s11, 0")
        s(f"s_mov_b32 s{S_K+2}, {17*131072}"); s(f"s_mov_b32 s{S_K+3}, 0x20000")
        s(f"s_add_u32 s{S_V}, s12, s72"); s(f"s_addc_u32 s{S_V+1}, s13, 0")
        s(f"s_mov_b32 s{S_V+2}, {17*131072}"); s(f"s_mov_b32 s{S_V+3}, 0x20000")
        s(f"s_mul_i32 s72, s{S_GBI}, 1572864")
        s(f"s_add_u32 s{S_O}, s{S_WS}, s72"); s(f"s_addc_u32 s{S_O+1}, s{S_WS+1}, 0")
        s(f"s_mov_b32 s{S_O+2}, 1572864"); s(f"s_mov_b32 s{S_O+3}, 0x20000")
        s("s_mul_i32 s72, s2, 98304"); s(f"s_add_u32 s72, s72, {QWS}")
        s(f"s_add_u32 s{S_Q}, s{S_WS}, s72"); s(f"s_addc_u32 s{S_Q+1}, s{S_WS+1}, 0")
        s(f"s_mov_b32 s{S_Q+2}, 98304"); s(f"s_mov_b32 s{S_Q+3}, 0x20000")
        s(f"s_mul_i32 s{S_OBA}, s{S_W}, {3*131072}"); s("s_lshl_b32 s72, s7, 12"); s(f"s_add_u32 s{S_OBA}, s{S_OBA}, s72")
        s(f"s_mov_b32 s{S_THR}, 0x{f32bits(2.0**40):x}")
        sc = f32bits(math.log2(math.e) / math.sqrt(128.0))
        s(f"s_mov_b32 s{S_SC}, 0x{sc:x}"); s(f"s_mov_b32 s{S_SC+1}, 0x{sc:x}")
        s(f"s_mov_b32 s{S_WOW+2}, {4096*1152}"); s(f"s_mov_b32 s{S_WOW+3}, 0x20000")
        s(f"s_lshr_b32 s8, s{S_W8}, 1"); s(f"s_and_b32 s9, s{S_W8}, 1")
        s(f"s_and_b32 s72, s{S_M}, 3"); s("s_mul_i32 s72, s72, 288")
        s(f"s_mul_i32 s73, s8, {512*1152}"); s("s_add_u32 s73, s73, s72")
        s(f"s_add_u32 s{S_WO}, s{S_WOW}, s73"); s(f"s_addc_u32 s{S_WO+1}, s{S_WOW+1}, 0")
        s(f"s_sub_u32 s{S_WO+2}, {4096*1152}, s73"); s(f"s_mov_b32 s{S_WO+3}, 0x20000")
        s("s_mul_i32 s73, s5, 192"); s(f"s_lshr_b32 s74, s{S_M}, 2"); s("s_mul_i32 s75, s74, 96"); s("s_add_u32 s73, s73, s75")
        s("s_mul_i32 s75, s9, 48"); s("s_add_u32 s73, s73, s75"); s("s_mul_i32 s73, s73, 2304")
        s(f"s_lshr_b32 s75, s{S_GBI}, 4"); s("s_mul_i32 s75, s75, 1152"); s("s_add_u32 s73, s73, s75"); s("s_add_u32 s73, s73, s72")
        s(f"s_add_u32 s{S_OUT}, s36, s73"); s(f"s_addc_u32 s{S_OUT+1}, s37, 0")
        s(f"s_mov_b32 s{S_OUT+2}, {47*2304+288}"); s(f"s_mov_b32 s{S_OUT+3}, 0x20000")
        s(f"s_mul_i32 s{S_PB}, s8, {RINGB}")
        s(f"s_lshl_b32 s{S_P1024}, s9, 10"); s(f"s_add_u32 s{S_P1024}, s{S_P1024}, s{S_PB}")
        s(f"s_mul_i32 s{S_OBG}, s74, {6*131072}"); s(f"s_mul_i32 s73, s9, {3*131072}"); s(f"s_add_u32 s{S_OBG}, s{S_OBG}, s73")
        s("s_lshl_b32 s73, s8, 14"); s(f"s_add_u32 s{S_OBG}, s{S_OBG}, s73")
        s(f"s_movk_i32 s{S_K4}, 4096"); s(f"s_movk_i32 s{S_K8}, 8192")
        VV(f"v_xor_b32 v{c}, v{a}, v{b}", [a, b], [c])
        VV(f"v_lshlrev_b32 v{c}, 4, v{c}", [c], [c])
        VV(f"v_lshl_add_u32 v{VOK}, v{a}, 8, v{c}", [a, c], [VOK])
        VV(f"v_and_b32 v{c}, 7, v{a}", [a], [c])
        VV(f"v_lshlrev_b32 v{c}, 1, v{c}", [c], [c])
        VV(f"v_xor_b32 v{c}, v{c}, v{b}", [c, b], [c])
        VV(f"v_lshlrev_b32 v{c}, 4, v{c}", [c], [c])
        VV(f"v_lshl_add_u32 v{VOV}, v{a}, 8, v{c}", [a, c], [VOV])
        qp_addrs(Pp, FR + 8)

    if cfg.types == 2:
        sr(f"s_bitcmp1_b32 s{S_M}, 0"); sr("s_cbranch_scc1 L_type1")
    P = finish(P)
    reissue = {}; resume = {}; progs = []
    for ty in range(cfg.types):
        pre, Mn, ri, rs = program(cfg, ty)
        reissue.update(ri); resume.update(rs)
        Pp = []
        if ty: Pp.append(label("L_type1"))
        for g in pre: Pp.extend(g)
        rest(Pp, ty)
        progs.append(finish(Pp + Mn))
    E = [label("L_fin")]
    def se(t): E.append(raw(t))
    VE = lambda t, rd, wr: E.append(valu(t, rd, wr))
    E.append(waitall()); se("s_nop 7")
    wa, ra, rb, oa, tg = 4, 5, 6, 7, 8
    CP = 14 * 1024
    se(f"s_mul_i32 s72, s{S_W8}, {CP}")
    VE(f"v_lshl_add_u32 v{wa}, v{LN}, 4, s72", [LN], [wa])
    se(f"s_and_b32 s9, s{S_W8}, 1"); se(f"s_lshr_b32 s8, s{S_W8}, 1")
    se(f"s_mul_i32 s72, s9, {CP}"); se("s_lshl_b32 s73, s8, 10"); se("s_add_u32 s72, s72, s73")
    VE(f"v_lshl_add_u32 v{ra}, v{LN}, 4, s72", [LN], [ra])
    VE(f"v_add_u32 v{rb}, {4*CP}, v{ra}", [ra], [rb])
    VE(f"v_and_b32 v{oa}, 15, v{LN}", [LN], [oa])
    VE(f"v_mul_u32_u24 v{oa}, 2304, v{oa}", [oa], [oa])
    VE(f"v_lshrrev_b32 v{tg}, 4, v{LN}", [LN], [tg])
    VE(f"v_lshl_add_u32 v{oa}, v{tg}, 3, v{oa}", [tg, oa], [oa])
    for ps in range(2):
        nt = 14 if ps == 0 else 13
        E.append(waitall(vm=False)); E.append(barrier())
        for k in range(nt):
            x = OACC + 4 * (ps * 14 + k)
            E.append(ds_write(f"ds_write_b128 v{wa}, {R(x,4)} offset:{k*1024}", rng(x, 4) + [wa]))
        E.append(waitall(vm=False)); E.append(barrier())
        for i in range(4):
            bb = BST + i * 16
            for cpy in range(4):
                E.append(ds_read(f"ds_read_b128 {R(bb+4*cpy,4)}, v{ra if cpy < 2 else rb} offset:{i*4096 + (cpy%2)*2*CP}", ra if cpy < 2 else rb, rng(bb + 4 * cpy, 4)))
        for i in range(4):
            bb = BST + i * 16
            for e_ in (0, 2):
                VE(f"v_pk_add_f32 {R(bb+e_,2)}, {R(bb+e_,2)}, {R(bb+4+e_,2)}", [bb + e_, bb + e_ + 1, bb + 4 + e_, bb + 5 + e_], [bb + e_, bb + e_ + 1])
                VE(f"v_pk_add_f32 {R(bb+8+e_,2)}, {R(bb+8+e_,2)}, {R(bb+12+e_,2)}", [bb + 8 + e_, bb + 9 + e_, bb + 12 + e_, bb + 13 + e_], [bb + 8 + e_, bb + 9 + e_])
                VE(f"v_pk_add_f32 {R(bb+e_,2)}, {R(bb+e_,2)}, {R(bb+8+e_,2)}", [bb + e_, bb + e_ + 1, bb + 8 + e_, bb + 9 + e_], [bb + e_, bb + e_ + 1])
            VE(f"v_cvt_pk_bf16_f32 v{bb}, v{bb}, v{bb+1}", [bb, bb + 1], [bb])
            VE(f"v_cvt_pk_bf16_f32 v{bb+1}, v{bb+2}, v{bb+3}", [bb + 2, bb + 3], [bb + 1])
            se(f"s_add_u32 s10, s8, {4*i}")
            se(f"s_add_u32 s11, s10, {14*ps}")
            se("s_mul_i32 s12, s11, 86"); se("s_lshr_b32 s12, s12, 8")
            se("s_mul_i32 s13, s12, 3"); se("s_sub_u32 s13, s11, s13")
            se(f"s_mul_i32 s13, s13, {16*2304}"); se("s_lshl_b32 s12, s12, 5"); se("s_add_u32 s13, s13, s12")
            se(f"s_cmp_ge_u32 s10, {nt}"); se("s_cselect_b32 s13, 0x40000000, s13")
            E.append(vstore(f"buffer_store_dwordx2 {R(bb,2)}, v{oa}, s[{S_OUT}:{S_OUT+3}], s13 offen", [bb, bb + 1, oa], wide=False))
    stampm(E, cfg, TA, TB)
    se("s_endpgm")
    E.append(label("L_fallback"))
    E.append(waitall()); se("s_nop 7")
    se(f"s_lshl_b32 s{S_KOFF}, s{S_ITEM}, 21"); se(f"s_lshl_b32 s{S_WOFF}, s{S_ITEM}, 12")
    E.append(barrier())
    dma_offs(E, FR); qp_addrs(E, FR + 8)
    v = cfg.verbose; cfg.verbose = False
    sem = []; qproj(sem, cfg, 9, 9); att_addrs(sem, NEGM)
    pre3, fq, _ = place_tiles(schedule(sem, cfg.valu_rate, cfg.valu_burst), cfg)
    for g in pre3: E.extend(g)
    E.extend(fq)
    for qt in range(3): VE(f"v_mov_b32 v{NM(qt)+1}, 0xff800000", [], [NM(qt) + 1])
    se(f"s_mov_b32 s{S_CNT}, 0")
    E.append(label("L_fb_loop"))
    E.append(waitall()); E.append(barrier())
    for c_ in range(2):
        E.append(salu(f"s_add_u32 m0, s{S_W1024}, {c_*4096}", swr=['m0']))
        E.append(salu(f"s_add_u32 s{S_TMP}, s{S_CNT}, {c_*4096}"))
        E.append(salu(f"s_add_u32 s{S_TMP}, s{S_TMP}, s{S_KOFF}"))
        E.append(dma(f"buffer_load_dwordx4 v{VOK}, s[{S_K}:{S_K+3}], s{S_TMP} offen lds", [VOK]))
    E.append(waitall()); E.append(barrier())
    for kt in range(2):
        for t in range(4):
            fr = ACC + (kt * 4 + t) * 4
            E.append(ds_read(f"ds_read_b128 {R(fr,4)}, v{KAD+t} offset:{kt*4096}", KAD + t, rng(fr, 4)))
    for kt in range(2):
        for t in range(4):
            fr = ACC + (kt * 4 + t) * 4
            for qt in range(3):
                d_ = S_(XB, kt, qt)
                E.append(mfma16(d_, fr, Q_(qt, t), d_ if t else None))
    for qt in range(3):
        m = NM(qt) + 1
        for kt in range(2):
            a_ = S_(XB, kt, qt)
            VE(f"v_max3_f32 v{m}, v{m}, v{a_}, v{a_+1}", [m, a_, a_ + 1], [m])
            VE(f"v_max3_f32 v{m}, v{m}, v{a_+2}, v{a_+3}", [m, a_ + 2, a_ + 3], [m])
    se("s_nop 7"); se(f"s_add_u32 s{S_CNT}, s{S_CNT}, 8192"); se(f"s_cmp_lt_u32 s{S_CNT}, 131072"); se("s_cbranch_scc1 L_fb_loop")
    for qt in range(3): xlane_max(E, NM(qt) + 1, NM(qt) + 2)
    for qt in range(3): set_negm(E, qt, NM(qt) + 1)
    E.append(waitall()); E.append(barrier())
    sem = []
    attention(sem, 9, True)
    pre2, fb, _ = place_tiles(schedule(sem, cfg.valu_rate, cfg.valu_burst), cfg)
    cfg.verbose = v
    for g in pre2: E.extend(g)
    E.extend(fb)
    E.append(waitall()); se("s_nop 7"); E.append(barrier())
    for r in sorted(reissue):
        se(f"s_cmp_eq_u32 s{S_RET}, {r}"); se(f"s_cbranch_scc0 L_fbn{r}")
        epilogue_norm(E, resume[r][0])
        if resume[r][0] == 'O': op_addrs(E)
        if resume[r][0] == 'A': q_addr(E, 1); E.extend(q_list(1, False))
        for t, l in reissue[r]:
            for g in tile_dma(t, l, cfg): E.extend(g)
        E.append(waitall()); se("s_nop 7")
        se(f"s_branch L_after{r}")
        E.append(label(f"L_fbn{r}"))
    se("s_endpgm")
    return P + progs[0] + finish(E) + (progs[1] if len(progs) > 1 else [])

import re
def compress(text):
    out = []
    pat = re.compile(r"v_mfma_f32_16x16x32_bf16 v\[(\d+):\d+\], v\[(\d+):\d+\], v\[(\d+):\d+\], (0|v\[(\d+):\d+\])$")
    pt = re.compile(r"ds_read_b64_tr_b16 v\[(\d+):\d+\], v(\d+) offset:(\d+)$")
    for l in text.splitlines():
        s = l.strip()
        m = pat.match(s)
        if m:
            if m.group(4) == '0': out.append(f"MZ {m.group(1)},{m.group(2)},{m.group(3)}")
            elif m.group(5) == m.group(1): out.append(f"MA {m.group(1)},{m.group(2)},{m.group(3)}")
            else: out.append(f"MC {m.group(1)},{m.group(2)},{m.group(3)},{m.group(5)}")
            continue
        m = pt.match(s)
        if m: out.append(f"TR {m.group(1)},{m.group(2)},{m.group(3)}"); continue
        out.append(s)
    return "\n".join(out) + "\n"
MACROS = r""".macro MA d,a,b
v_mfma_f32_16x16x32_bf16 v[\d:\d+3], v[\a:\a+3], v[\b:\b+3], v[\d:\d+3]
.endm
.macro MZ d,a,b
v_mfma_f32_16x16x32_bf16 v[\d:\d+3], v[\a:\a+3], v[\b:\b+3], 0
.endm
.macro MC d,a,b,c
v_mfma_f32_16x16x32_bf16 v[\d:\d+3], v[\a:\a+3], v[\b:\b+3], v[\c:\c+3]
.endm
.macro TR d,a,o
ds_read_b64_tr_b16 v[\d:\d+1], v\a offset:\o
.endm
"""

if __name__ == "__main__":
    import sys
    NAME = "concat_heads__mha_block_cached__mha_block_cached__near_ridge"
    cfg = Cfg(); path = f"cdna_kernels/{NAME}.s"
    for a in sys.argv[1:]:
        if a.startswith("out="): path = a[4:]; continue
        k, v = a.split("=", 1)
        try: v = eval(v)
        except Exception: pass
        setattr(cfg, k, v)
    ref = open(f"cdna_kernels/{NAME}.s.ref").read()
    head = []
    for line in ref.splitlines():
        if not line.startswith(';'): break
        if '@launch' not in line: head.append(line)
    P = gen(cfg)
    nm = NAME + "_kernel"
    s = "\n".join(head) + "\n; @launch grid=(256,1,1) block=(512,1,1) lds=163840\n"
    s += '.amdgcn_target "amdgcn-amd-amdhsa--gfx950"\n' + MACROS + '.text\n'
    s += f".globl {nm}\n.p2align 8\n.type {nm},@function\n{nm}:\n" + compress(render(P))
    s += f""".section .rodata,"a"
.p2align 6
.amdhsa_kernel {nm}
  .amdhsa_next_free_vgpr 256
  .amdhsa_next_free_sgpr 100
  .amdhsa_accum_offset 256
  .amdhsa_group_segment_fixed_size 0
  .amdhsa_kernarg_size 104
  .amdhsa_user_sgpr_count 2
  .amdhsa_user_sgpr_kernarg_segment_ptr 1
  .amdhsa_system_sgpr_workgroup_id_x 1
.end_amdhsa_kernel
"""
    open(path, "w").write(s)
    print("instrs", len(P), "bytes", len(s))
```

```python
from asmlib import *
import math, struct
from mega import (f32bits, ACC, O_, QB, Q_, XB, YB, S_, NEGM, NM, LB, L_, ONES, FR, NFR, KAD, VAD, XF, Rot, lane_id,
                  softmax, xlane_max, set_negm, first_max, fence)
NXF = 4
def XFr(k, qt): return XF + (k % NXF) * 12 + qt * 4

class Cfg:
    valu_rate = 2.0
    valu_burst = 2
    kv_flags = " nt"
    stamps = False
    warm = True
    dma_gap = 2
    xpos0 = 5
    kvdepth = 2
    drop = ''
    verbose = False
    types = 1
    gslp = 8
    fine = False
    qst = (16, 19)
    ost = (14, 24, 34)
    osig = 10
    opoll = 14
    otouch = False
    early = True
    otl = 6
    rate2 = 3
    dwarm = False
    map2 = True
    dT = 6
    pair = False
    kvdelay = 0
    vdepth = None
    dr = ((2, 16), (0, 0))
    steps = None
    w0fl = ' nt'
    x0fl = ''
    x0n = 9
    dsch = (204, 206, 208, 210, 212, 999, 999, 999)
    obar = 2
    tou = 99
    twj = (99, 98)
    tmk = 99
    tstart = False
    tbit = 0
    tcode = 20
    t0 = False
    wfl = ''
    tfl = ''

VOW, VOX, VOV, VOK = 0, 1, 2, 3
WAD = 52; XAD = 60; QT = 41
SLOT = 8192; RINGB = 40960; REG = 81920; GR = 1024
OACC = 148
def OA(nu, qt): return OACC + (nu * 3 + qt) * 4
VOD = 52; AAD = 57; VOB = 58; LN = 59
BST = 60
C4 = [112, 124, 136, 4]; C8 = [64, 76, 88, 100, 112, 124, 136, 4]
def B_(u, qt): return (C4[u % 4] if u < 12 else C8[(u - 12) % 8]) + qt * 4
GFR = 16; NGFR = 5
OSL = 9216
TA, TB = 40, 41
ODST = {'Q': [QB + 4 * i for i in range(12)], 'A': [O_(2 * t, qt) for qt in range(3) for t in range(4)],
        'O': [64 + 4 * i for i in range(6)] + [100, 104, 108, 88, 92, 96]}

S_X, S_WQ, S_K, S_V, S_O, S_Q, S_WO, S_OUT, S_WOW, S_PK = 40, 44, 48, 52, 56, 80, 16, 20, 24, 28
S_W = 60; S_W1024 = 61; S_W8 = 62; S_GB = 63
S_C1, S_C2 = 64, 65
S_TMP = 66; S_THR = 67; S_SC = 68; S_CNT = 70; S_M = 71
S_DBG = 84; S_GBI = 86; S_RET = 87; S_P1024 = 88; S_OBA = 89
S_WS = 90; S_SA = 92; S_SPIN = 93; S_OBG = 94; S_KOFF = 95; S_FLG = 96; S_NEED = 98; S_ITEM = 99; S_XB = 32; S_FL = 78; S_DW = 79; S_K4 = 33; S_K8 = 34; S_WOFF = 35
QWS = 0x3200000; FLGWS = 0x6400000; PKWS = 0x8000000

def tile_dma(tile, loc, cfg):
    kind, it, i = tile
    out = []
    if kind == 'P':
        for c in range(3):
            g = [salu(f"s_add_u32 m0, s{S_P1024}, {loc + c * 1024}", swr=['m0']),
                 salu(f"s_mov_b32 s{S_TMP}, {(it * 2048 + i * 32) * 1152}")]
            if c == 2: g.append(salu("s_mov_b64 exec, 0xffff"))
            g.append(dma(f"buffer_load_dwordx4 v{VOD+c}, s[{S_WO}:{S_WO+3}], s{S_TMP} offen{cfg.wfl} lds", [VOD + c], tag=tile))
            if c == 2:
                r = salu("s_mov_b64 exec, -1"); r.tag = tile; g.append(r)
            out.append(g)
        return out
    for c in range(3 if kind == 'X' else 2):
        mv = None
        if kind == 'X': goff = c * 32 * 1152 + i * 128; srd = S_X; vo = VOX; fl = (cfg.x0fl if (it == 0 and i < cfg.x0n) else cfg.wfl)
        elif kind == 'W':
            goff = (i * 32 + c * 16) * 8192; srd = S_WQ; vo = VOW; fl = (cfg.w0fl if it == 0 else cfg.wfl)
            if it == 9: mv = salu(f"s_add_u32 s{S_TMP}, s{S_WOFF}, {goff}")
            else: goff += it * 4096
        else:
            goff = i * 8192 + c * 4096; srd = S_K if kind == 'K' else S_V; vo = VOK if kind == 'K' else VOV; fl = cfg.kv_flags
            if it == 9: mv = salu(f"s_add_u32 s{S_TMP}, s{S_KOFF}, {goff}")
            else: goff += it * 16 * 131072
        out.append([salu(f"s_add_u32 m0, s{S_W1024}, {loc + c * 4096}", swr=['m0']),
                    mv or salu(f"s_mov_b32 s{S_TMP}, {goff}"),
                    dma(f"buffer_load_dwordx4 v{vo}, s[{srd}:{srd+3}], s{S_TMP} offen{fl} lds", [vo], tag=tile)])
    return out

def lds_read(op, dst, n, tile, sel, inner):
    ad = {'K': KAD, 'V': VAD, 'W': WAD, 'X': XAD, 'P': AAD}[tile[0]] + sel
    return I('?', 'dsr', [ad], rng(dst, n), tag=tile, extra=(op, dst, n, ad, inner))

def resolve(ins, loc):
    op, dst, n, ad, inner = ins.extra
    off = loc - RINGB if ins.tag[0] in 'VW' else loc
    ins.text = f"{op} {R(dst, n)}, v{ad} offset:{off + inner}"

def granules(kind, l):
    size = {'K': SLOT, 'V': SLOT, 'W': SLOT, 'X': 12288, 'F': 1024, 'P': OSL, 'R': REG, 'D': 4096, 'E': 4096}[kind]
    g = list(range(l // GR, (l + size) // GR))
    return g
CAND = {'K': [i * SLOT for i in range(5)], 'V': [RINGB + i * SLOT for i in range(5)], 'W': [RINGB + i * SLOT for i in range(5)],
        'X': [0, 12288, 24576], 'D': [4 * SLOT], 'E': [36864], 'F': [36864], 'P': [i * OSL for i in range(7)], 'R': [0]}

def place_tiles(prog, cfg, earliest=None):
    earliest = earliest or {}
    nb = -1; order = {}; last = {}; barpos = []; mark = {}
    for i, ins in enumerate(prog):
        if ins.kind == 'barrier' and ins.tag is not None: nb += 1; barpos.append(i)
        if ins.kind == 'marker': mark[ins.tag] = i
        if ins.kind in ('dsr', 'dsw') and ins.tag is not None:
            assert nb >= 0
            order.setdefault(ins.tag, (nb, i)); last[ins.tag] = nb
    first = {t: order[t][0] for t in order}
    nbar = nb + 1
    dl = {t: barpos[first[t]] for t in first}
    freeat = [-1] * 80
    loc = {}; issue_at = {}
    for t in sorted(first, key=lambda t: order[t]):
        kind = t[0]
        ft = lambda l: max(freeat[g] for g in granules(kind, l))
        cands = CAND[kind]
        if kind == 'K' and t[1] < 2 and cfg.dwarm: cands = cands[:4]
        l = min(cands, key=lambda l: (ft(l), cands.index(l)))
        f = ft(l)
        if kind in 'FRDE': assert f <= first[t], (t, f, first[t])
        else: assert f < first[t] or f == -1, (t, l, f, first[t])
        loc[t] = l
        if kind not in 'FRDE':
            d_ = cfg.kvdepth if kind == 'K' else (cfg.vdepth or cfg.kvdepth)
            if kind in 'KV' and t[1] < 2 and cfg.dr[t[1]][0] <= t[2] < cfg.dr[t[1]][1]: d_ = 1
            if cfg.pair and kind in 'KV' and (first[t] + (kind == 'V')) % 2 == 1: d_ += 1
            issue_at[t] = max(f, first[t] - d_) if kind in 'KV' else f
        for g in granules(kind, l): freeat[g] = last[t] + 1
    for ins in prog:
        if ins.kind == 'dsr' and ins.tag is not None and ins.tag[0] not in 'FRDE': resolve(ins, loc[ins.tag])
        if ins.kind in ('dsr', 'dsw', 'raw') and ins.tag is not None and ins.tag[0] == 'F': ins.text = ins.text.replace('@F', str(loc[ins.tag]))
    need = [[] for _ in range(nbar)]; free = [[] for _ in range(nbar + 1)]
    for t in first:
        if t[0] not in 'FRDE': need[first[t]].append(t)
        free[last[t] + 1].append(t)
    issue = [[] for _ in range(nbar)]; pre = []
    for t in sorted(issue_at, key=lambda t: order[t]):
        if issue_at[t] < 0 and (t[0], t[1]) not in earliest: pre.extend(tile_dma(t, loc[t], cfg))
        else: issue[max(0, issue_at[t])].append(t)
    out = []; nb = -1; pend = []; cnt = 0; held = []; since = 0
    def push(gs):
        pend.extend(gs); pend.sort(key=lambda g: order[g[-1].tag])
    ok = lambda t, i: earliest.get((t[0], t[1])) is None or i >= mark[earliest[(t[0], t[1])]]
    for i, ins in enumerate(prog):
        for t in [t for t in held if ok(t, i)]:
            held.remove(t); push(tile_dma(t, loc[t], cfg))
        while pend and dl[pend[0][-1].tag] <= i: out.extend(pend.pop(0))
        if ins.kind == 'marker' and ins.tag.startswith('flush'):
            while pend: out.extend(pend.pop(0))
        if ins.kind == 'barrier' and ins.tag is not None:
            nb += 1; since = 0
            assert not any(t in need[nb] for t in held), held
            out.append(waittag(vm=need[nb] + (ins.extra or []), lg=free[nb]))
            out.append(ins)
            for t in issue[nb]:
                if ok(t, i): push(tile_dma(t, loc[t], cfg))
                else: held.append(t)
            continue
        out.append(ins)
        if ins.kind == 'mfma': since += 1
        if ins.kind == 'mfma' and pend:
            t0_ = pend[0][-1].tag
            if t0_[0] in 'KV' and first[t0_] - nb >= 2 and since < cfg.kvdelay: continue
            cnt += 1
            if cnt % cfg.dma_gap == 0: out.extend(pend.pop(0))
    assert not pend and not held
    assert cfg.kvdepth + cfg.pair <= 3
    if cfg.verbose:
        for t in sorted(first, key=lambda t: order[t]): print(t, 'loc', loc[t] // GR, 'issue', issue_at.get(t), 'first', first[t], 'last', last[t])
    return pre, out, loc

def qk(sem, F, it, j, buf, usem):
    for kt in range(2):
        for t in range(4):
            fr = F.next()
            sem.append(lds_read("ds_read_b128", fr, 4, ('K', it, j), t, kt * 4096))
            for qt in range(3):
                d = S_(buf, kt, qt)
                sem.append(mfma16(d, fr, Q_(qt, t), d if t > 0 else (NM(qt) if usem else None)))

def pv(sem, F, it, j, buf, hook=None):
    first = (j == 0)
    for qt in range(3): sem.append(mfma16(L_(qt), ONES, S_(buf, 0, qt), None if first else L_(qt)))
    for s in range(8):
        if hook and j == 15 and s == 3: hook(sem, 16, None)
        fr = F.next()
        for h in range(2): sem.append(lds_read("ds_read_b64_tr_b16", fr + 2 * h, 2, ('V', it, j), s, h * 4096))
        for qt in range(3): sem.append(mfma16(O_(s, qt), fr, S_(buf, 0, qt), None if first else O_(s, qt)))

def attention(sem, it, preset, hook=None, F=None, cvt=False, cfg=None):
    F = F or Rot(FR, NFR); bufs = [XB, YB]
    sem.append(barrier(0))
    if cvt:
        for t in range(4):
            qcvt(sem, t)
            for kt in range(2):
                fr = F.next()
                sem.append(lds_read("ds_read_b128", fr, 4, ('K', it, 0), t, kt * 4096))
                for qt in range(3):
                    d = S_(bufs[0], kt, qt)
                    sem.append(mfma16(d, fr, Q_(qt, t), d if t > 0 else None))
    else: qk(sem, F, it, 0, bufs[0], preset)
    qk(sem, F, it, 1, bufs[1], preset)
    if not preset: first_max(sem, bufs[0])
    for j in range(16):
        softmax(sem, bufs[j % 2], (not preset) and j < 2)
        if j < 15:
            b = barrier(0); sem.append(b)
        if hook: hook(sem, j, b)
        pv(sem, F, it, j, bufs[j % 2], hook)
        if j + 2 < 16: qk(sem, F, it, j + 2, bufs[j % 2], True)

def qproj(sem, cfg, it, xid, hook=None, F=None):
    F = F or Rot(FR, NFR)
    XPOS = {}
    for stp in range(9):
        for qt in range(3): XPOS.setdefault(0 if stp == 0 else (12 + qt if (stp == 1 and it == 0 and cfg.early) else 16 * (stp - 1) + cfg.xpos0 + qt), []).append((stp, qt))
    for k in range(18):
        if k % 2 == 0:
            b = barrier(0); sem.append(b)
            if hook: hook(sem, k, b)
        if k == 1 and it == 0 and cfg.early: sem.append(fence()); sem.append(barrier(0)); sem.append(fence())
        for T in range(8):
            if hook and k == 0 and T == 3: hook(sem, -1, None)
            if hook and T == cfg.dT: hook(sem, 1000 + k, None)
            if k == 17 and T == 0: sem.append(marker(f'rate={cfg.rate2}'))
            for (stp, qt) in XPOS.get(k * 8 + T, []):
                for kk in range(2): sem.append(lds_read("ds_read_b128", XFr(2 * stp + kk, qt), 4, ('X', xid, stp), kk, qt * 2048))
            fr = F.next()
            for h in range(2): sem.append(lds_read("ds_read_b64_tr_b16", fr + 2 * h, 2, ('W', it, k), T, h * 1024))
            for qt in range(3): sem.append(mfma16(O_(T, qt), fr, XFr(k, qt), None if k == 0 else O_(T, qt)))

def qcvt(sem, t):
    for qt in range(3):
        a_ = O_(2 * t, qt); b_ = O_(2 * t + 1, qt); q = Q_(qt, t)
        for r in (a_, a_ + 2, b_, b_ + 2):
            sem.append(valu(f"v_pk_mul_f32 {R(r,2)}, {R(r,2)}, s[{S_SC}:{S_SC+1}]", [r, r + 1], [r, r + 1]))
        sem.append(valu(f"v_cvt_pk_bf16_f32 v{q}, v{a_}, v{a_+1}", [a_, a_ + 1], [q]))
        sem.append(valu(f"v_cvt_pk_bf16_f32 v{q+1}, v{a_+2}, v{a_+3}", [a_ + 2, a_ + 3], [q + 1]))
        sem.append(valu(f"v_cvt_pk_bf16_f32 v{q+2}, v{b_}, v{b_+1}", [b_, b_ + 1], [q + 2]))
        sem.append(valu(f"v_cvt_pk_bf16_f32 v{q+3}, v{b_+2}, v{b_+3}", [b_ + 2, b_ + 3], [q + 3]))
    for qt in range(3):
        q = Q_(qt, t)
        for x in range(2): sem.append(perm(f"v_permlane32_swap_b32 v{q+x}, v{q+2+x}", [q + x, q + 2 + x]))
    for qt in range(3):
        q = Q_(qt, t)
        for x in range(2): sem.append(perm(f"v_permlane16_swap_b32 v{q+x}, v{q+2+x}", [q + x, q + 2 + x]))

def epilogue_norm(sem, mode):
    D = ODST[mode]
    for qt in range(3):
        l = L_(qt)
        sem.append(trans(f"v_rcp_f32 v{l+2}, v{l}", [l], [l + 2]))
        sem.append(valu(f"v_mov_b32 v{l+3}, v{l+2}", [l + 2], [l + 3]))
    for t in range(4):
        for qt in range(3):
            l = L_(qt); d = D[frag_slot(mode, qt, t)]
            a = O_(2 * t, qt); b = O_(2 * t + 1, qt)
            for r in (a, a + 2, b, b + 2):
                sem.append(valu(f"v_pk_mul_f32 {R(r,2)}, {R(r,2)}, {R(l+2,2)}", [r, r + 1, l + 2, l + 3], [r, r + 1]))
            sem.append(valu(f"v_cvt_pk_bf16_f32 v{d}, v{a}, v{a+1}", [a, a + 1], [d]))
            sem.append(valu(f"v_cvt_pk_bf16_f32 v{d+1}, v{a+2}, v{a+3}", [a + 2, a + 3], [d + 1]))
            sem.append(valu(f"v_cvt_pk_bf16_f32 v{d+2}, v{b}, v{b+1}", [b, b + 1], [d + 2]))
            sem.append(valu(f"v_cvt_pk_bf16_f32 v{d+3}, v{b+2}, v{b+3}", [b + 2, b + 3], [d + 3]))
def frag_slot(mode, qt, t): return qt * 4 + t if mode != 'O' else t * 3 + qt

def o_addr(p, T, item):
    lane_id(p, T)
    p.append(raw(f"s_add_u32 s72, s{S_OBA}, {item*65536}"))
    p.append(valu(f"v_lshl_add_u32 v{T}, v{T}, 4, s72", [T], [T]))
def o_store_list(T, mode, tag):
    L = []
    for t in range(4):
        for qt in range(3):
            so = ['0', f"s{S_C1}", f"s{S_C2}"][qt]
            a = ODST[mode][frag_slot(mode, qt, t)]
            L.append(vstore(f"buffer_store_dwordx4 {R(a,4)}, v{T}, s[{S_O}:{S_O+3}], {so} offen offset:{t*1024} sc1", rng(a, 4) + [T], tag=tag))
    return L
def q_addr(p, T):
    lane_id(p, T)
    p.append(raw(f"s_mul_i32 s72, s{S_W8}, 12288"))
    p.append(valu(f"v_lshl_add_u32 v{T}, v{T}, 4, s72", [T], [T]))
def q_list(T, store):
    L = []
    for qt in range(3):
        so = ['0', f"s{S_K4}", f"s{S_K8}"][qt]
        for t in range(4):
            q = Q_(qt, t)
            if store: L.append(vstore(f"buffer_store_dwordx4 {R(q,4)}, v{T}, s[{S_Q}:{S_Q+3}], {so} offen offset:{t*1024}", rng(q, 4) + [T]))
            else: L.append(vload(f"buffer_load_dwordx4 {R(q,4)}, v{T}, s[{S_Q}:{S_Q+3}], {so} offen offset:{t*1024} sc1", [T], rng(q, 4)))
    return L
def sprinkle(sem, items, start, every):
    out = []; c = 0; items = list(items)
    for x in sem:
        out.append(x)
        if x.kind == 'mfma':
            c += 1
            if items and c >= start and (c - start) % every == 0: out.append(items.pop(0))
    assert not items
    sem[:] = out

def sprinkle_b(sem, items, pos, first=0):
    out = []; c = 0; nb = -1; items = list(items)
    for x in sem:
        out.append(x)
        if x.kind == 'barrier': c = 0; nb += 1
        if x.kind == 'mfma':
            c += 1
            if items and nb >= first and c in pos: out.append(items.pop(0))
    assert not items
    sem[:] = out

def dma_offs(p, tmp):
    a, b, c, d, e, LANE = range(tmp, tmp + 6)
    V = lambda t, rd, wr: p.append(valu(t, rd, wr))
    lane_id(p, LANE)
    V(f"v_lshrrev_b32 v{d}, 4, v{LANE}", [LANE], [d])
    V(f"v_lshl_add_u32 v{a}, s{S_W}, 2, v{d}", [d], [a])
    V(f"v_and_b32 v{b}, 15, v{LANE}", [LANE], [b])
    V(f"v_and_b32 v{c}, 3, v{a}", [a], [c])
    V(f"v_lshrrev_b32 v{e}, 3, v{a}", [a], [e])
    V(f"v_lshl_add_u32 v{c}, v{e}, 2, v{c}", [e, c], [c])
    V(f"v_lshlrev_b32 v{c}, 1, v{c}", [c], [c])
    V(f"v_xor_b32 v{c}, v{c}, v{b}", [c, b], [c])
    V(f"v_lshlrev_b32 v{c}, 4, v{c}", [c], [c])
    V(f"v_lshl_add_u32 v{VOW}, v{a}, 13, v{c}", [a, c], [VOW])
    for t in (f"s_lshr_b32 s73, s{S_W8}, 2", "s_mul_i32 s73, s73, 96", f"s_lshl_b32 s74, s{S_W}, 3", "s_add_u32 s73, s73, s74",
              f"s_and_b32 s74, s{S_W}, 1", "s_lshl_b32 s74, s74, 2"): p.append(raw(t))
    V(f"v_lshrrev_b32 v{c}, 3, v{LANE}", [LANE], [c])
    V(f"v_add_u32 v{c}, s73, v{c}", [c], [c])
    V(f"v_mul_u32_u24 v{c}, 1152, v{c}", [c], [c])
    V(f"v_and_b32 v{e}, 7, v{LANE}", [LANE], [e])
    V(f"v_xor_b32 v{e}, v{e}, v{d}", [e, d], [e])
    V(f"v_xor_b32 v{e}, s74, v{e}", [e], [e])
    V(f"v_lshl_add_u32 v{VOX}, v{e}, 4, v{c}", [e, c], [VOX])

def att_addrs(p, tmp):
    a, b, c, d = tmp, tmp + 1, tmp + 2, tmp + 3
    V = lambda t, rd, wr: p.append(valu(t, rd, wr))
    lane_id(p, a)
    V(f"v_and_b32 v{b}, 15, v{a}", [a], [b])
    V(f"v_lshrrev_b32 v{c}, 4, v{a}", [a], [c])
    V(f"v_xor_b32 v{d}, v{b}, v{c}", [b, c], [d])
    V(f"v_lshlrev_b32 v{d}, 4, v{d}", [d], [d])
    V(f"v_lshl_add_u32 v{d}, v{b}, 8, v{d}", [b, d], [d])
    V(f"v_add_u32 v{KAD}, s{S_GB}, v{d}", [d], [KAD])
    for t in range(1, 4): V(f"v_xor_b32 v{KAD+t}, {t*64}, v{KAD}", [KAD], [KAD + t])
    V(f"v_lshrrev_b32 v{b}, 2, v{a}", [a], [b])
    V(f"v_and_b32 v{c}, 3, v{a}", [a], [c])
    V(f"v_lshlrev_b32 v{c}, 3, v{c}", [c], [c])
    V(f"v_lshl_add_u32 v{c}, v{b}, 8, v{c}", [b, c], [c])
    V(f"v_and_b32 v{d}, 7, v{b}", [b], [d])
    V(f"v_lshl_add_u32 v{c}, v{d}, 5, v{c}", [d, c], [c])
    V(f"v_add_u32 v{c}, {RINGB}, v{c}", [c], [c])
    V(f"v_add_u32 v{VAD}, s{S_GB}, v{c}", [c], [VAD])
    for s in range(1, 8): V(f"v_xor_b32 v{VAD+s}, {s*32}, v{VAD}", [VAD], [VAD + s])
    for e in range(4): V(f"v_mov_b32 v{ONES+e}, 0x3f803f80", [], [ONES + e])

def qp_addrs(p, tmp):
    a, b, c, d, e = range(tmp, tmp + 5)
    V = lambda t, rd, wr: p.append(valu(t, rd, wr))
    lane_id(p, e)
    V(f"v_and_b32 v{b}, 15, v{e}", [e], [b])
    V(f"v_lshrrev_b32 v{d}, 4, v{e}", [e], [d])
    V(f"v_lshrrev_b32 v{c}, 1, v{b}", [b], [c])
    V(f"v_xor_b32 v{c}, v{c}, v{d}", [c, d], [c])
    V(f"v_lshlrev_b32 v{c}, 4, v{c}", [c], [c])
    V(f"v_lshl_add_u32 v{c}, v{b}, 7, v{c}", [b, c], [c])
    V(f"v_add_u32 v{XAD}, s{S_XB}, v{c}", [c], [XAD])
    V(f"v_xor_b32 v{XAD+1}, 64, v{XAD}", [XAD], [XAD + 1])
    V(f"v_lshrrev_b32 v{a}, 2, v{e}", [e], [a])
    V(f"v_and_b32 v{a}, 3, v{a}", [a], [a])
    V(f"v_lshl_add_u32 v{b}, v{d}, 3, v{a}", [d, a], [b])
    V(f"v_and_b32 v{c}, 1, v{d}", [d], [c])
    V(f"v_lshl_add_u32 v{c}, v{c}, 2, v{a}", [c, a], [c])
    V(f"v_lshlrev_b32 v{c}, 5, v{c}", [c], [c])
    V(f"v_lshl_add_u32 v{c}, v{b}, 8, v{c}", [b, c], [c])
    V(f"v_and_b32 v{e}, 3, v{e}", [e], [e])
    V(f"v_lshl_add_u32 v{c}, v{e}, 3, v{c}", [e, c], [c])
    V(f"v_add_u32 v{c}, {RINGB}, v{c}", [c], [c])
    V(f"v_add_u32 v{WAD}, s{S_GB}, v{c}", [c], [WAD])
    for T in range(1, 8): V(f"v_xor_b32 v{WAD+T}, {T*32}, v{WAD}", [WAD], [WAD + T])

def op_addrs(p):
    a, b, c = 60, 61, 62
    V = lambda t, rd, wr: p.append(valu(t, rd, wr))
    lane_id(p, LN)
    p.append(raw("s_movk_i32 s75, 3641")); p.append(raw(f"s_mul_i32 s73, s{S_W}, 144"))
    for cc in range(3):
        V(f"v_add_u32 v{a}, s73, v{LN}", [LN], [a])
        if cc: V(f"v_add_u32 v{a}, {64*cc}, v{a}", [a], [a])
        V(f"v_mul_u32_u24 v{b}, s75, v{a}", [a], [b])
        V(f"v_lshrrev_b32 v{b}, 16, v{b}", [b], [b])
        V(f"v_mul_u32_u24 v{c}, 18, v{b}", [b], [c])
        V(f"v_sub_u32 v{c}, v{a}, v{c}", [a, c], [c])
        V(f"v_mul_u32_u24 v{b}, 1152, v{b}", [b], [b])
        V(f"v_lshl_add_u32 v{VOD+cc}, v{c}, 4, v{b}", [c, b], [VOD + cc])
    V(f"v_lshrrev_b32 v{a}, 2, v{LN}", [LN], [a])
    V(f"v_mul_u32_u24 v{a}, 288, v{a}", [a], [a])
    V(f"v_and_b32 v{b}, 3, v{LN}", [LN], [b])
    V(f"v_lshl_add_u32 v{a}, v{b}, 3, v{a}", [b, a], [a])
    V(f"v_add_u32 v{AAD}, s{S_GB}, v{a}", [a], [AAD])

def touch(p, t0, dst, srd, nshare_expr, per, soff, mode):
    w1, w2, w0 = t0, t0 + 1, t0 + 2
    V = lambda t, rd, wr: p.append(valu(t, rd, wr))
    lane_id(p, w2)
    for t in nshare_expr: p.append(raw(t))
    p.append(raw(f"s_mul_i32 s72, s72, {per}"))
    p.append(raw(f"s_mov_b32 s73, {soff}"))
    n = 1 if per <= 64 else 2
    h = per // n
    for i in range(n):
        V(f"v_min_u32 v{w1}, {h-1}, v{w2}", [w2], [w1])
        V(f"v_add_u32 v{w1}, s72, v{w1}", [w1], [w1])
        if mode == 'wq':
            V(f"v_and_b32 v{w0}, 1, v{w1}", [w1], [w0])
            V(f"v_lshrrev_b32 v{w1}, 1, v{w1}", [w1], [w1])
            V(f"v_lshlrev_b32 v{w1}, 13, v{w1}", [w1], [w1])
            V(f"v_lshl_add_u32 v{w1}, v{w0}, 7, v{w1}", [w0, w1], [w1])
        else: V(f"v_lshlrev_b32 v{w1}, 7, v{w1}", [w1], [w1])
        p.append(vload(f"buffer_load_dword v{dst+i}, v{w1}, s[{srd}:{srd+3}], s73 offen{TFL[0]}", [w1], [dst + i]))
        if i + 1 < n: p.append(raw(f"s_add_u32 s72, s72, {h}"))

def touch_wq(p, t0, dst, it):
    if MAP2[0]: touch(p, t0, dst, S_WQ, [f"s_and_b32 s72, s{S_GBI}, 7", "s_lshl_b32 s72, s72, 2", f"s_add_u32 s72, s72, s{S_W}"], 36, it * 4096, 'wq')
    else: touch(p, t0, dst, S_WQ, [f"s_and_b32 s72, s{S_GBI}, 3", "s_lshl_b32 s72, s72, 2", f"s_add_u32 s72, s72, s{S_W}"], 72, it * 4096, 'wq')
def touch_wo(p, t0, dst, st, nsh):
    sh = ["s_lshr_b32 s72, s2, 3"] + (["s_lshr_b32 s72, s72, 1"] if nsh == 16 else []) + ["s_lshl_b32 s72, s72, 3", f"s_add_u32 s72, s72, s{S_W8}"]
    per = 18432 // (nsh * 8)
    for r in range(per // 72):
        touch(p, t0, dst + 2 * r, S_WOW, sh, 72, st * 2048 * 1152 + r * nsh * 8 * 72 * 128, 'lin')

def touch_wo_raw(p, st):
    for h in range(2):
        for t in ("s_lshr_b32 s72, s2, 3", "s_lshl_b32 s72, s72, 3", f"s_add_u32 s72, s72, s{S_W8}", "s_mul_i32 s72, s72, 72", f"s_add_u32 s72, s72, {36*h}",
                  f"s_mov_b32 s73, {st*2048*1152}",
                  "v_mbcnt_lo_u32_b32 v0, -1, 0", "v_mbcnt_hi_u32_b32 v0, -1, v0", "v_min_u32 v0, 35, v0", "v_add_u32 v0, s72, v0", "v_lshlrev_b32 v0, 7, v0",
                  f"buffer_load_dword v1, v0, s[{S_WOW}:{S_WOW+3}], s73 offen{TFL[0]}"): p.append(raw(t))

def touch_mall(p, t0, dst, ty=0):
    sh = ["s_and_b32 s72, s2, 3", "s_lshr_b32 s73, s2, 3", "s_lshl_b32 s73, s73, 2", "s_add_u32 s72, s72, s73", "s_lshl_b32 s72, s72, 3", f"s_add_u32 s72, s72, s{S_W8}"]
    touch(p, t0, dst, S_WOW, sh, 36, 0, 'lin')
    touch(p, t0, dst + 1, S_WQ, [f"s_and_b32 s72, s{S_GBI}, 15", "s_lshl_b32 s72, s72, 2", f"s_add_u32 s72, s72, s{S_W}"], 18, 4096 * (1 - ty), 'wq')

def signal(p, ta, tb, val, lab, atomic=False):
    p.append(raw(f"s_cmp_lg_u32 s{S_W8}, 0")); p.append(raw(f"s_cbranch_scc1 {lab}"))
    p.append(raw(f"s_lshl_b32 s73, s{S_GBI if atomic else S_M}, 2"))
    p.append(valu(f"v_mov_b32 v{ta}, s73", [], [ta]))
    p.append(valu(f"v_mov_b32 v{tb}, {val}", [], [tb]))
    p.append(raw("s_mov_b64 exec, 1"))
    if atomic: p.append(raw(f"global_atomic_add v{ta}, v{tb}, s[{S_DBG}:{S_DBG+1}] sc1"))
    else: p.append(raw(f"global_store_dword v{ta}, v{tb}, s[{S_FLG}:{S_FLG+1}] sc0 sc1"))
    p.append(raw("s_mov_b64 exec, -1"))
    p.append(label(lab))

def poll(p, lab, ta, tb, base, off, nl, need, slp):
    for t in (f"s_mov_b32 s{S_SPIN}, 0", f"v_mbcnt_lo_u32_b32 v{tb}, -1, 0", f"v_lshl_add_u32 v{tb}, v{tb}, 2, {off}", f"s_mov_b64 exec, {(1 << nl) - 1}"): p.append(raw(t))
    p.append(label(lab + "_l"))
    for t in (f"global_load_dword v{ta}, v{tb}, s[{base}:{base+1}] sc0 sc1", "s_waitcnt vmcnt(0)", f"v_cmp_gt_u32 vcc, {need}, v{ta}",
              f"s_add_u32 s{S_SPIN}, s{S_SPIN}, 1", "s_nop 4", "s_cmp_eq_u64 vcc, 0", f"s_cbranch_scc1 {lab}_d",
              f"s_sleep {slp}", f"s_cmp_lt_u32 s{S_SPIN}, 100000", f"s_cbranch_scc1 {lab}_l"): p.append(raw(t))
    p.append(label(lab + "_d"))
    p.append(raw("s_mov_b64 exec, -1"))

def stampm(p, cfg, ta, tb):
    if not cfg.stamps: return
    p.append(I("s_memrealtime s[76:77]", 'stamp'))
    p.append(valu(f"v_mov_b32 v{ta}, s{S_SA}", [], [ta]))
    p.append(valu(f"v_mov_b32 v{tb}, s76", [], [tb]))
    p.append(raw(f"global_store_dword v{ta}, v{tb}, s[{S_WS}:{S_WS+1}]"))
    p.append(raw(f"s_add_u32 s{S_SA}, s{S_SA}, 4"))
    p.append(raw("s_nop 1"))

DROP = ['']
TFL = ['']
MAP2 = [True]
def finish(p):
    p = insert_waits(p)
    if DROP[0]:
        for i in p:
            if i.kind == 'dma' and i.tag and i.tag[0] in DROP[0]: i.text = 's_nop 0'
            if 'B' in DROP[0] and i.kind == 'vld' and f's[{S_O}:' in i.text: i.text = 's_nop 0'
            if 'S' in DROP[0] and i.kind == 'vst' and i.tag == ('OST', 1): i.text = 's_nop 0'
            if 'T' in DROP[0] and i.kind == 'vst' and i.tag == ('OST', 0): i.text = 's_nop 0'
            if 's_cbranch_scc1 L_fallback' in i.text: i.text = 's_nop 0'
    p, n = insert_nops(p); return p

def flag_write(L, n, T0, T1):
    L.append(valu(f"v_cmp_nge_f32 vcc, s{S_THR}, v{L_(0)}", [L_(0)], [], swr=['vcc']))
    L.append(valu(f"v_cmp_nge_f32 s[72:73], s{S_THR}, v{L_(1)}", [L_(1)], [], swr=['s72']))
    L.append(valu(f"v_cmp_nge_f32 s[74:75], s{S_THR}, v{L_(2)}", [L_(2)], [], swr=['s74']))
    for t in ("s_nop 4", "s_or_b64 s[72:73], s[72:73], s[74:75]", "s_or_b64 s[72:73], s[72:73], vcc", "s_cmp_lg_u64 s[72:73], 0",
              "s_cselect_b32 s72, 1, 0", f"s_lshl_b32 s73, s{S_W8}, 2"): L.append(raw(t))
    L.append(valu(f"v_mov_b32 v{T0}, s73", [], [T0]))
    L.append(valu(f"v_mov_b32 v{T1}, s72", [], [T1]))
    L.append(I(f"ds_write_b32 v{T0}, v{T1} offset:@F", 'dsw', [T0, T1], tag=('F', n, 0)))
def flag_read(L, n, T0):
    lane_id(L, T0)
    L.append(valu(f"v_and_b32 v{T0}, 7, v{T0}", [T0], [T0]))
    L.append(valu(f"v_lshlrev_b32 v{T0}, 2, v{T0}", [T0], [T0]))
    L.append(I(f"ds_read_b32 v{T0}, v{T0} offset:@F", 'dsr', [T0], [T0], tag=('F', n, 0)))
def flag_check(L, n, T0):
    L.append(valu(f"v_cmp_ne_u32 vcc, 0, v{T0}", [T0], [], swr=['vcc']))
    L.append(I(f"s_mov_b32 s{S_FL}, @F", 'raw', tag=('F', n, 0))); L.append(raw(f"s_mov_b32 s{S_ITEM}, {n}"))
    for t in ("s_nop 3", "s_cmp_lg_u64 vcc, 0", "s_cbranch_scc1 L_fallback"): L.append(raw(t))

def apoll_issue(L, lab, ta, tb, base, off, nl):
    for t in (f"s_cmp_lg_u32 s{S_W8}, 0", f"s_cbranch_scc1 {lab}", f"v_mbcnt_lo_u32_b32 v{tb}, -1, 0", f"v_lshl_add_u32 v{tb}, v{tb}, 2, {off}",
              f"s_mov_b64 exec, {(1 << nl) - 1}", f"global_load_dword v{ta}, v{tb}, s[{base}:{base+1}] sc0 sc1", "s_mov_b64 exec, -1"): L.append(raw(t))
    L.append(label(lab))
def apoll_check(L, lab, ta, tb, base, off, nl, need, slp):
    for t in (f"s_cmp_lg_u32 s{S_W8}, 0", f"s_cbranch_scc1 {lab}", f"s_mov_b64 exec, {(1 << nl) - 1}", f"v_cmp_gt_u32 vcc, {need}, v{ta}", "s_mov_b64 exec, -1",
              "s_nop 3", "s_cmp_eq_u64 vcc, 0", f"s_cbranch_scc1 {lab}"): L.append(raw(t))
    poll(L, lab + "p", ta, tb, base, off, nl, need, slp)
    L.append(label(lab))

def bload(u):
    it, uu = u // 16, u % 16
    L = []
    if u and u % 4 == 0: L.append(valu(f"v_add_u32 v{VOB}, {4096 if u != 16 else 65536 - 12288}, v{VOB}", [VOB], [VOB]))
    for qt in range(3):
        so = ['0', f"s{S_C1}", f"s{S_C2}"][qt]
        L.append(vload(f"buffer_load_dwordx4 {R(B_(u,qt),4)}, v{VOB}, s[{S_O}:{S_O+3}], {so} offen offset:{(u%4)*1024} sc1", [VOB], rng(B_(u, qt), 4)))
    return L
TOV, TWV, TDST = 55, 56, 63
def otouch_addrs(L):
    V = lambda t, rd, wr: L.append(valu(t, rd, wr))
    a, b = 60, 61
    V(f"v_min_u32 v{a}, 47, v{LN}", [LN], [a])
    V(f"v_lshrrev_b32 v{b}, 4, v{a}", [a], [b])
    V(f"v_lshlrev_b32 v{b}, 17, v{b}", [b], [b])
    V(f"v_and_b32 v{a}, 15, v{a}", [a], [a])
    V(f"v_lshl_add_u32 v{b}, v{a}, 7, v{b}", [a, b], [b])
    for t in (f"s_and_b32 s72, s{S_M}, 3", "s_lshl_b32 s72, s72, 11", f"s_add_u32 s72, s72, s{S_OBG}"): L.append(raw(t))
    V(f"v_add_u32 v{TOV}, s72, v{b}", [b], [TOV])
    V(f"v_min_u32 v{a}, 23, v{LN}", [LN], [a])
    V(f"v_mul_u32_u24 v{b}, 86, v{a}", [a], [b])
    V(f"v_lshrrev_b32 v{b}, 8, v{b}", [b], [b])
    V(f"v_mul_u32_u24 v{TWV}, 3, v{b}", [b], [TWV])
    V(f"v_sub_u32 v{a}, v{a}, v{TWV}", [a, TWV], [a])
    for t in (f"s_and_b32 s72, s{S_GBI}, 7", "s_lshl_b32 s72, s72, 2", f"s_add_u32 s72, s72, s{S_W}", "s_lshl_b32 s72, s72, 3"): L.append(raw(t))
    V(f"v_add_u32 v{b}, s72, v{b}", [b], [b])
    V(f"v_mul_u32_u24 v{b}, 1152, v{b}", [b], [b])
    V(f"v_lshl_add_u32 v{TWV}, v{a}, 7, v{b}", [a, b], [TWV])
def otouch(u0, o=True, w=True):
    st, uu = u0 // 16, u0 % 16
    L = []
    if o: L += [raw(f"s_mov_b32 s72, {st*65536 + uu*1024}"), raw(f"buffer_load_dword v{TDST}, v{TOV}, s[{S_O}:{S_O+3}], s72 offen sc1")]
    if w: L += [raw(f"s_mov_b32 s72, {(st*2048 + uu*32)*1152}"), raw(f"buffer_load_dword v{TDST}, v{TWV}, s[{S_WO}:{S_WO+3}], s72 offen")]
    for x in L: x.kind = 'salu'
    return L
def o_setup(L):
    op_addrs(L)
    otouch_addrs(L)
    L.append(valu(f"v_lshl_add_u32 v{VOB}, v{LN}, 4, s{S_OBG}", [LN], [VOB]))
    for u in range(3): L += bload(u)

def dummy(i, loc):
    L = [raw(f"s_add_u32 m0, s{S_W1024}, {loc}")]
    if i < 5:
        L += [raw(f"s_mul_i32 s72, s{S_DW}, 18432"), raw(f"s_add_u32 s72, s72, {i*4096}"),
              raw(f"buffer_load_dwordx4 v{VOK}, s[{S_WOW}:{S_WOW+3}], s72 offen lds")]
    else:
        L += [raw(f"s_mul_i32 s72, s{S_DW}, 9"), raw("s_lshr_b32 s72, s72, 2"), raw(f"s_add_u32 s72, s72, {i-5}"), raw("s_lshl_b32 s72, s72, 13"),
              raw("s_lshl_b32 s73, s7, 8"), raw("s_sub_u32 s72, s72, s73"), raw("s_add_u32 s72, s72, 4096"),
              raw(f"buffer_load_dwordx4 v{VOK}, s[{S_WQ}:{S_WQ+3}], s72 offen lds")]
    for x in L: x.kind = 'salu'
    return L
STK = [8, 9, 10, 11, 12, 13, 14, 15, 36, 37, 38, 39]
def program(cfg, ty):
    M = [marker('start')]
    earliest = {('K', 0): 'start', ('V', 0): 'start', ('K', 1): 'start', ('V', 1): 'start', ('P', 0): 'pok'}
    resume = {0: ('Q', 1), 1: ('O', 0)}
    fx = lambda L: [fence()] + L + [fence()]
    def fstamp(sem, n, pos):
        if cfg.steps == n and 0 <= pos < 12:
            sem.append(I("s_memrealtime s[76:77]", 'stamp')); sem.append(salu(f"s_mov_b32 s{STK[pos]}, s76"))
        if cfg.fine and cfg.fine[0] == n and pos in cfg.fine[1]:
            k_ = (8, 12, 36)[cfg.fine[1].index(pos)]
            sem.append(I(f"s_memtime s[{k_}:{k_+1}]", 'stamp')); sem.append(I(f"s_memrealtime s[{k_+2}:{k_+3}]", 'stamp'))
    def sst(sem, a, b):
        if cfg.stamps:
            L = []; stampm(L, cfg, a, b); sem.extend(fx(L))
    for it in range(2):
        lab = f"L{it}"
        sem = []; F = Rot(FR, NFR)
        st = []
        if it: o_addr(M, LB, 0); st = o_store_list(LB, 'Q', ('OST', 0))
        def qhook(sem, k, b):
            fstamp(sem, 2 * it, k)
            if k >= 1000:
                if k - 1000 in (2, 17): sem.append(I('', 'dsw', tag=('E', it, 0)))
                for i in [i for i in range(8) if cfg.dsch[i] == k - 1000 + 200 + 100 * it]: sem.extend(dummy(i, 36864))
                return
            if k == 0 and it:
                L = []; flag_read(L, 0, QT + 4); sem.extend(L)
            if k == -1 and it:
                L = []; flag_check(L, 0, QT + 4); sem.extend(fx(L))
            if k == 2 and it == 0:
                L = []; signal(L, QT, QT + 1, 1, lab + "i", atomic=True); sem.extend(fx(L))
            if k == 14 and it:
                b.extra = [('OST', 0)]
                L = []; signal(L, QT, QT + 1, 1, lab + "s"); sem.extend(fx(L))
        qproj(sem, cfg, it, it, qhook, F)
        sprinkle_b(sem, st, cfg.qst)
        sst(sem, QT, QT + 1)
        def ahook(sem, j, b):
            fstamp(sem, 2 * it + 1, j)
            if j == 1: sem.append(marker(f'rate={cfg.valu_rate}'))
            if cfg.dwarm and j == 1: sem.append(I('', 'dsw', tag=('D', it, 0)))
            for i in ([i for i in range(8) if cfg.dsch[i] == j + 100 * it] if cfg.dwarm else []): sem.extend(dummy(i, 4 * SLOT))
            if cfg.dwarm and j == 13: sem.append(I('', 'dsw', tag=('D', it, 0)))
            if it == 1 and j == 3:
                L = [raw(f"s_lshl_b32 s74, s{S_GBI}, 2")]; apoll_issue(L, lab + "a", 0, 1, S_DBG, "s74", 1); sem.extend(fx(L))
            if it == 1 and j == 7:
                L = [raw(f"s_lshl_b32 s74, s{S_GBI}, 2")]; apoll_check(L, lab + "b", 0, 1, S_DBG, "s74", 1, 8, 64)
                L += [raw(f"s_lshr_b32 s74, s{S_M}, 2"), raw("s_lshl_b32 s74, s74, 4")]
                apoll_issue(L, lab + "c", 0, 1, S_FLG, "s74", 4); sem.extend(fx(L))
            if it == 1 and j == 11:
                L = [raw(f"s_lshr_b32 s74, s{S_M}, 2"), raw("s_lshl_b32 s74, s74, 4")]
                apoll_check(L, lab + "d", 0, 1, S_FLG, "s74", 4, 1, cfg.gslp); sem.extend(fx(L))
            if j == 14:
                L = []
                if it == 0:
                    if cfg.warm: touch_wq(L, QB, QB + 44, 1)
                    qp_addrs(L, QB + 4)
                else:
                    o_setup(L)
                    if cfg.otouch: L += otouch(0)
                sem.extend(fx(L) + [marker('pok' if it else 'x')])
            if j == 15: sem.append(marker(f'rate={cfg.rate2}'))
            if j == 16:
                L = []; flag_write(L, it, 62 - 2 * it, 63 - 2 * it); sem.extend(fx(L))
        attention(sem, it, False, ahook, F, cvt=True)
        epilogue_norm(sem, resume[it][0])
        M += schedule(sem, cfg.valu_rate, cfg.valu_burst)
        M.append(marker('flush'))
        M.append(label(f"L_after{it}"))
        M.append(waitall(vm=False))
        stampm(M, cfg, QT, QT + 1)
    o_addr(M, TA + 4, 1); st = o_store_list(TA + 4, 'O', ('OST', 1))
    sem = []; F = Rot(GFR, NGFR)
    for u in range(32):
        if u % cfg.obar == 0:
            b = barrier(0); sem.append(b)
        fstamp(sem, 4, u)
        if u == 0:
            L = []; flag_read(L, 1, TA + 5); sem.extend(L)
        if u == cfg.osig:
            b.extra = [('OST', 1)]
            L = []; signal(L, TA, TB, 2, "Los"); sem.extend(fx(L))
        if u == cfg.opoll - 1:
            L = [raw(f"s_lshr_b32 s74, s{S_M}, 2"), raw("s_lshl_b32 s74, s74, 4"), raw(f"s_cmp_lg_u32 s{S_W8}, 0"), raw("s_cbranch_scc1 Loc")]
            poll(L, "Lod", TA + 2, TB + 2, S_FLG, "s74", 4, 2, cfg.gslp); L.append(label("Loc"))
            sem.extend(fx(L))
        if u == cfg.opoll:
            for uu in range(u, 16): sem.extend(bload(uu))
            sem.append(fence())
            sst(sem, TA, TB)
        if u == 16: sst(sem, TA, TB)
        if cfg.otouch:
            if u + cfg.otl in (8, 24): sem.extend(otouch(u + cfg.otl))
            if u + cfg.otl == 16: sem.extend(otouch(16, o=False))
            if u == cfg.opoll: sem.extend(otouch(16, w=False))
        if u >= 3 and not (cfg.opoll <= u < 16): sem.extend(bload(u))
        for nu in range(9):
            if u == 0 and nu == 3:
                L = []; flag_check(L, 1, TA + 5); sem.extend(fx(L))
            fr = F.next()
            for h in range(2): sem.append(lds_read("ds_read_b64_tr_b16", fr + 2 * h, 2, ('P', u // 16, u % 16), 0, h * 4608 + nu * 32))
            for qt in range(3): sem.append(mfma16(OA(nu, qt), fr, B_(u, qt), None if u == 0 else OA(nu, qt)))
    sprinkle_b(sem, st, cfg.ost)
    M += schedule(sem)
    M.append(marker('flush'))
    stampm(M, cfg, TA, TB); stampm(M, cfg, TA, TB)
    if cfg.fine:
        M.append(raw("s_lshl_b32 s72, s2, 3")); M.append(raw(f"s_add_u32 s72, s72, s{S_W8}")); M.append(raw("s_lshl_b32 s72, s72, 6")); M.append(raw("s_add_u32 s72, s72, 0x7000028"))
        M.append(valu(f"v_mov_b32 v{LB+1}, s72", [], [LB + 1]))
        for q_, k_ in enumerate((8, 10, 12, 14, 36, 38)):
            M.append(valu(f"v_mov_b32 v{LB+2}, s{k_}", [], [LB + 2]))
            M.append(raw(f"global_store_dword v{LB+1}, v{LB+2}, s[{S_WS}:{S_WS+1}] offset:{4*q_}")); M.append(raw("s_nop 1"))
    if cfg.steps is not None:
        M.append(raw("s_lshl_b32 s72, s2, 3")); M.append(raw(f"s_add_u32 s72, s72, s{S_W8}")); M.append(raw("s_lshl_b32 s72, s72, 6")); M.append(raw("s_add_u32 s72, s72, 0x7020000"))
        M.append(valu(f"v_mov_b32 v{LB+1}, s72", [], [LB + 1]))
        for q_, k_ in enumerate(STK):
            M.append(valu(f"v_mov_b32 v{LB+2}, s{k_}", [], [LB + 2]))
            M.append(raw(f"global_store_dword v{LB+1}, v{LB+2}, s[{S_WS}:{S_WS+1}] offset:{4*q_}")); M.append(raw("s_nop 1"))
    M.append(raw("s_branch L_fin"))
    pre, M, loc = place_tiles(M, cfg, earliest)
    reissue = {}; cur = []
    done = set()
    for ins in M:
        if ins.kind == 'dma' and ins.tag not in cur: cur.append(ins.tag)
        if ins.kind == 'dsr' and ins.tag is not None: done.add(ins.tag)
        if ins.kind == 'label' and ins.text.startswith('L_after'):
            reissue[int(ins.text[7:-1])] = [(t, loc[t]) for t in cur if t not in done]
    return pre, M, reissue, resume

def gen(cfg):
    DROP[0] = cfg.drop; TFL[0] = cfg.tfl; MAP2[0] = cfg.map2
    P = []
    def sr(t): P.append(raw(t))
    V = lambda t, rd, wr: P.append(valu(t, rd, wr))
    sr("s_cmp_lt_u32 s2, 256"); sr("s_cbranch_scc1 L_go"); sr("s_endpgm"); P.append(label("L_go"))
    sr("s_load_dwordx16 s[16:31], s[0:1], 0")
    sr("s_load_dwordx8 s[32:39], s[0:1], 64")
    sr(f"s_load_dwordx2 s[{S_WS}:{S_WS+1}], s[0:1], 96")
    LANE = FR + 8
    V(f"v_lshrrev_b32 v{FR}, 6, v0", [0], [FR])
    V(f"v_and_b32 v{LANE}, 63, v0", [0], [LANE])
    P.append(valu(f"v_readfirstlane_b32 s{S_W8}, v{FR}", [FR], [], swr=[f"s{S_W8}"]))
    sr("s_and_b32 s3, s2, 7"); sr("s_lshr_b32 s4, s2, 3")
    if cfg.map2:
        sr(f"s_and_b32 s{S_M}, s4, 3"); sr("s_and_b32 s5, s3, 1"); sr("s_lshl_b32 s5, s5, 2"); sr(f"s_add_u32 s{S_M}, s{S_M}, s5")
        sr("s_lshr_b32 s5, s4, 2"); sr(f"s_lshr_b32 s{S_GBI}, s3, 1"); sr(f"s_lshl_b32 s{S_GBI}, s{S_GBI}, 3"); sr(f"s_add_u32 s{S_GBI}, s{S_GBI}, s5")
    else:
        sr(f"s_and_b32 s{S_M}, s4, 7")
        sr("s_lshr_b32 s5, s4, 3"); sr(f"s_lshl_b32 s{S_GBI}, s3, 2"); sr(f"s_add_u32 s{S_GBI}, s{S_GBI}, s5")
    sr(f"s_and_b32 s{S_W}, s{S_W8}, 3"); sr(f"s_lshr_b32 s6, s{S_W8}, 2")
    sr(f"s_lshl_b32 s7, s{S_M}, 1"); sr("s_add_u32 s7, s7, s6")
    sr(f"s_mul_i32 s{S_GB}, s6, {REG}")
    sr(f"s_lshl_b32 s{S_W1024}, s{S_W}, 10"); sr(f"s_add_u32 s{S_W1024}, s{S_W1024}, s{S_GB}")
    sr(f"s_mov_b32 s{S_C1}, 131072"); sr(f"s_mov_b32 s{S_C2}, 262144")
    if cfg.stamps:
        sr("s_lshl_b32 s72, s2, 3"); sr(f"s_add_u32 s72, s72, s{S_W8}"); sr("s_lshl_b32 s72, s72, 6"); sr(f"s_add_u32 s{S_SA}, s72, 0x7000000")
    dma_offs(P, FR)
    sr("s_waitcnt lgkmcnt(0)")
    sr(f"s_cmp_lt_u32 s{S_GBI}, 16")
    sr("s_cselect_b64 s[8:9], s[16:17], s[26:27]")
    sr("s_cselect_b64 s[10:11], s[18:19], s[28:29]")
    sr("s_cselect_b64 s[12:13], s[20:21], s[30:31]")
    sr("s_cselect_b64 s[14:15], s[22:23], s[32:33]")
    sr(f"s_cselect_b64 s[{S_WOW}:{S_WOW+1}], s[24:25], s[34:35]")
    sr(f"s_mov_b64 s[{S_DBG}:{S_DBG+1}], s[38:39]")
    sr(f"s_and_b32 s5, s{S_GBI}, 15"); sr("s_mul_i32 s72, s5, 221184")
    sr(f"s_add_u32 s{S_X}, s8, s72"); sr(f"s_addc_u32 s{S_X+1}, s9, 0")
    sr(f"s_mov_b32 s{S_X+2}, 221184"); sr(f"s_mov_b32 s{S_X+3}, 0x20000")
    sr("s_lshl_b32 s72, s7, 8")
    sr(f"s_add_u32 s{S_WQ}, s14, s72"); sr(f"s_addc_u32 s{S_WQ+1}, s15, 0")
    sr(f"s_sub_u32 s{S_WQ+2}, {576*8192}, s72"); sr(f"s_mov_b32 s{S_WQ+3}, 0x20000")
    sr(f"s_lshl_b32 s72, s{S_GBI}, 8"); sr(f"s_add_u32 s72, s72, {FLGWS}")
    sr(f"s_add_u32 s{S_FLG}, s{S_WS}, s72"); sr(f"s_addc_u32 s{S_FLG+1}, s{S_WS+1}, 0")
    a, b, c, d, e = FR, FR + 1, FR + 2, FR + 3, FR + 4
    if cfg.tcode:
        sr("s_getpc_b64 s[72:73]")
        sr(f"s_cmp_lg_u32 s{S_W8}, 1"); sr("s_cbranch_scc1 L_tc")
        V(f"v_min_u32 v{QT+2}, {cfg.tcode-1}, v{LANE}", [LANE], [QT+2])
        sr(f"s_mul_i32 s74, s4, {cfg.tcode}")
        V(f"v_add_u32 v{QT+2}, s74, v{QT+2}", [QT+2], [QT+2])
        V(f"v_lshlrev_b32 v{QT+2}, 7, v{QT+2}", [QT+2], [QT+2])
        sr(f"global_load_dword v{QT+3}, v{QT+2}, s[72:73]")
        P.append(label("L_tc"))
    signal(P, QT, QT + 1, 0, "L_z")
    stampm(P, cfg, QT, QT + 1)

    def rest(Pp, ty):
        def s(t): Pp.append(raw(t))
        VV = lambda t, rd, wr: Pp.append(valu(t, rd, wr))
        if cfg.warm and cfg.tstart:
            s(f"s_mov_b32 s{S_WOW+2}, {4096*1152}"); s(f"s_mov_b32 s{S_WOW+3}, 0x20000")
            touch_mall(Pp, ACC, QT + 6, ty)
        if cfg.warm and cfg.t0:
            touch(Pp, ACC, QT + 8, S_X, [f"s_lshl_b32 s72, s{S_M}, 3", f"s_add_u32 s72, s72, s{S_W8}"], 27, 0, 'lin')
            touch_wq(Pp, ACC + 4, QT + 9, ty)
        s("s_lshl_b32 s72, s5, 5"); s("s_add_u32 s72, s72, s7"); s("s_lshl_b32 s72, s72, 17")
        s(f"s_add_u32 s{S_K}, s10, s72"); s(f"s_addc_u32 s{S_K+1}, s11, 0")
        s(f"s_mov_b32 s{S_K+2}, {17*131072}"); s(f"s_mov_b32 s{S_K+3}, 0x20000")
        s(f"s_add_u32 s{S_V}, s12, s72"); s(f"s_addc_u32 s{S_V+1}, s13, 0")
        s(f"s_mov_b32 s{S_V+2}, {17*131072}"); s(f"s_mov_b32 s{S_V+3}, 0x20000")
        s(f"s_mul_i32 s72, s{S_GBI}, 1572864")
        s(f"s_add_u32 s{S_O}, s{S_WS}, s72"); s(f"s_addc_u32 s{S_O+1}, s{S_WS+1}, 0")
        s(f"s_mov_b32 s{S_O+2}, 1572864"); s(f"s_mov_b32 s{S_O+3}, 0x20000")
        s("s_mul_i32 s72, s2, 98304"); s(f"s_add_u32 s72, s72, {QWS}")
        s(f"s_add_u32 s{S_Q}, s{S_WS}, s72"); s(f"s_addc_u32 s{S_Q+1}, s{S_WS+1}, 0")
        s(f"s_mov_b32 s{S_Q+2}, 98304"); s(f"s_mov_b32 s{S_Q+3}, 0x20000")
        s(f"s_mul_i32 s{S_OBA}, s{S_W}, {3*131072}"); s("s_lshl_b32 s72, s7, 12"); s(f"s_add_u32 s{S_OBA}, s{S_OBA}, s72")
        s(f"s_mov_b32 s{S_THR}, 0x{f32bits(2.0**40):x}")
        sc = f32bits(math.log2(math.e) / math.sqrt(128.0))
        s(f"s_mov_b32 s{S_SC}, 0x{sc:x}"); s(f"s_mov_b32 s{S_SC+1}, 0x{sc:x}")
        s(f"s_mov_b32 s{S_WOW+2}, {4096*1152}"); s(f"s_mov_b32 s{S_WOW+3}, 0x20000")
        s(f"s_lshr_b32 s8, s{S_M}, 2"); s("s_lshl_b32 s8, s8, 1"); s("s_add_u32 s8, s8, s6")
        s(f"s_and_b32 s72, s{S_M}, 3"); s("s_mul_i32 s72, s72, 288")
        s(f"s_mul_i32 s73, s8, {512*1152}"); s("s_add_u32 s73, s73, s72")
        s(f"s_add_u32 s{S_WO}, s{S_WOW}, s73"); s(f"s_addc_u32 s{S_WO+1}, s{S_WOW+1}, 0")
        s(f"s_sub_u32 s{S_WO+2}, {4096*1152}, s73"); s(f"s_mov_b32 s{S_WO+3}, 0x20000")
        s("s_mul_i32 s73, s5, 192"); s(f"s_mul_i32 s75, s{S_W}, 48"); s("s_add_u32 s73, s73, s75"); s("s_mul_i32 s73, s73, 2304")
        s(f"s_lshr_b32 s75, s{S_GBI}, 4"); s("s_mul_i32 s75, s75, 1152"); s("s_add_u32 s73, s73, s75"); s("s_add_u32 s73, s73, s72")
        s(f"s_add_u32 s{S_OUT}, s36, s73"); s(f"s_addc_u32 s{S_OUT+1}, s37, 0")
        s(f"s_mov_b32 s{S_OUT+2}, {47*2304+288}"); s(f"s_mov_b32 s{S_OUT+3}, 0x20000")
        s(f"s_mul_i32 s{S_P1024}, s{S_W}, 2304"); s(f"s_add_u32 s{S_P1024}, s{S_P1024}, s{S_GB}")
        s(f"s_mul_i32 s{S_OBG}, s{S_W}, {3*131072}"); s("s_lshl_b32 s73, s8, 14"); s(f"s_add_u32 s{S_OBG}, s{S_OBG}, s73")
        s(f"s_lshl_b32 s72, s{S_GBI}, 2"); s(f"s_and_b32 s73, s{S_M}, 3"); s("s_add_u32 s72, s72, s73")
        s("s_lshl_b32 s72, s72, 3"); s(f"s_add_u32 s72, s72, s{S_W8}"); s("s_mul_i32 s72, s72, 14336"); s(f"s_add_u32 s72, s72, {PKWS}")
        s(f"s_add_u32 s{S_PK}, s{S_WS}, s72"); s(f"s_addc_u32 s{S_PK+1}, s{S_WS+1}, 0")
        s(f"s_mov_b32 s{S_PK+2}, 14336"); s(f"s_mov_b32 s{S_PK+3}, 0x20000")
        s(f"s_movk_i32 s{S_K4}, 4096"); s(f"s_movk_i32 s{S_K8}, 8192")
        VV(f"v_xor_b32 v{c}, v{a}, v{b}", [a, b], [c])
        VV(f"v_lshlrev_b32 v{c}, 4, v{c}", [c], [c])
        VV(f"v_lshl_add_u32 v{VOK}, v{a}, 8, v{c}", [a, c], [VOK])
        VV(f"v_and_b32 v{c}, 7, v{a}", [a], [c])
        VV(f"v_lshlrev_b32 v{c}, 1, v{c}", [c], [c])
        VV(f"v_xor_b32 v{c}, v{c}, v{b}", [c, b], [c])
        VV(f"v_lshlrev_b32 v{c}, 4, v{c}", [c], [c])
        VV(f"v_lshl_add_u32 v{VOV}, v{a}, 8, v{c}", [a, c], [VOV])
        s(f"s_lshr_b32 s72, s{S_W}, 1"); s(f"s_mul_i32 s72, s72, {REG}"); s(f"s_and_b32 s73, s{S_W}, 1"); s(f"s_mul_i32 s73, s73, {48*128}"); s(f"s_add_u32 s{S_XB}, s72, s73")
        s("s_and_b32 s72, s2, 3"); s("s_lshl_b32 s73, s4, 2"); s("s_add_u32 s72, s72, s73"); s("s_lshl_b32 s72, s72, 1"); s(f"s_add_u32 s{S_DW}, s72, s6")
        qp_addrs(Pp, FR + 8)
        att_addrs(Pp, FR + 8)

    if cfg.types == 2:
        sr(f"s_bitcmp1_b32 s2, {cfg.tbit}"); sr("s_cbranch_scc1 L_type1")
    P = finish(P)
    reissue = {}; resume = {}; progs = []
    for ty in range(cfg.types):
        pre, Mn, ri, rs = program(cfg, ty)
        reissue.update(ri); resume.update(rs)
        Pp = []
        if ty: Pp.append(label("L_type1"))
        for g in pre: Pp.extend(g)
        rest(Pp, ty)
        progs.append(finish(Pp + Mn))
    E = [label("L_fin")]
    def se(t): E.append(raw(t))
    VE = lambda t, rd, wr: E.append(valu(t, rd, wr))
    E.append(waitall()); se("s_nop 7")
    wa, ra, oa, tg, xa = 4, 5, 7, 8, 9
    CP = 14 * 1024
    se(f"s_mul_i32 s72, s{S_W8}, {CP}"); se(f"s_xor_b32 s73, s{S_W8}, 4"); se(f"s_mul_i32 s73, s73, {CP}")
    VE(f"v_lshl_add_u32 v{wa}, v{LN}, 4, s72", [LN], [wa])
    VE(f"v_lshl_add_u32 v{ra}, v{LN}, 4, s73", [LN], [ra])
    VE(f"v_lshlrev_b32 v{xa}, 4, v{LN}", [LN], [xa])
    VE(f"v_and_b32 v{oa}, 15, v{LN}", [LN], [oa])
    VE(f"v_mul_u32_u24 v{oa}, 2304, v{oa}", [oa], [oa])
    VE(f"v_lshrrev_b32 v{tg}, 4, v{LN}", [LN], [tg])
    VE(f"v_lshl_add_u32 v{oa}, v{tg}, 3, v{oa}", [tg, oa], [oa])
    se(f"s_lshr_b32 s10, s{S_W}, 1"); se(f"s_lshr_b32 s11, s{S_M}, 2"); se("s_xor_b32 s10, s10, s11")
    E.append(barrier())
    se(f"s_cmp_ge_u32 s{S_W8}, 4"); se("s_cbranch_scc1 L_red1")
    for ks in range(2):
        own = list(range(14)) if ks == 0 else list(range(14, 27))
        oth = list(range(14, 27)) if ks == 0 else list(range(14))
        if ks: E.append(label("L_red1"))
        for k, t in enumerate(oth):
            E.append(ds_write(f"ds_write_b128 v{wa}, {R(OACC+4*t,4)} offset:{k*1024}", rng(OACC + 4 * t, 4) + [wa]))
        E.append(waitall(vm=False)); E.append(barrier())
        for k, t in enumerate(own):
            E.append(ds_read(f"ds_read_b128 {R(BST+4*k,4)}, v{ra} offset:{k*1024}", ra, rng(BST + 4 * k, 4)))
        def addall():
            for k, t in enumerate(own):
                x = OACC + 4 * t; y = BST + 4 * k
                for e_ in (0, 2): VE(f"v_pk_add_f32 {R(x+e_,2)}, {R(x+e_,2)}, {R(y+e_,2)}", [x + e_, x + e_ + 1, y + e_, y + e_ + 1], [x + e_, x + e_ + 1])
        addall()
        se("s_cmp_eq_u32 s10, 0"); se(f"s_cbranch_scc1 L_keep{ks}")
        for k, t in enumerate(own):
            if k % 4 == 0: se(f"s_movk_i32 s12, {k*1024}")
            E.append(vstore(f"buffer_store_dwordx4 {R(OACC+4*t,4)}, v{xa}, s[{S_PK}:{S_PK+3}], s12 offen offset:{(k%4)*1024} sc1", rng(OACC + 4 * t, 4) + [xa]))
        E.append(label(f"L_keep{ks}"))
        E.append(waitall()); E.append(barrier())
        signal(E, TA, TB, 3, f"L_sg{ks}")
        se("s_cmp_eq_u32 s10, 0"); se(f"s_cbranch_scc1 L_own{ks}")
        stampm(E, cfg, TA, TB)
        se("s_endpgm")
        E.append(label(f"L_own{ks}"))
        se(f"s_xor_b32 s74, s{S_M}, 4"); se("s_lshl_b32 s74, s74, 2")
        poll(E, f"L_xp{ks}", TA + 2, TB + 2, S_FLG, "s74", 1, 3, 2)
        for k, t in enumerate(own):
            if k % 4 == 0: se(f"s_movk_i32 s12, {k*1024}")
            E.append(vload(f"buffer_load_dwordx4 {R(BST+4*k,4)}, v{xa}, s[{S_PK}:{S_PK+3}], s12 offen offset:{(k%4)*1024} sc1", [xa], rng(BST + 4 * k, 4)))
        addall()
        for k, t in enumerate(own):
            x = OACC + 4 * t; nu, qt = t // 3, t % 3
            VE(f"v_cvt_pk_bf16_f32 v{x}, v{x}, v{x+1}", [x, x + 1], [x])
            VE(f"v_cvt_pk_bf16_f32 v{x+1}, v{x+2}, v{x+3}", [x + 2, x + 3], [x + 1])
            se(f"s_mov_b32 s12, {qt*16*2304}")
            E.append(vstore(f"buffer_store_dwordx2 {R(x,2)}, v{oa}, s[{S_OUT}:{S_OUT+3}], s12 offen offset:{nu*32}", [x, x + 1, oa], wide=False))
        stampm(E, cfg, TA, TB)
        se("s_endpgm")
        E.append(waitall())
    E.append(label("L_fallback"))
    E.append(waitall()); se("s_nop 7")
    se(f"s_lshl_b32 s{S_KOFF}, s{S_ITEM}, 21"); se(f"s_lshl_b32 s{S_WOFF}, s{S_ITEM}, 12")
    E.append(barrier())
    dma_offs(E, FR); qp_addrs(E, FR + 8)
    v = cfg.verbose; cfg.verbose = False
    att_addrs(E, FR + 8)
    sem = []; qproj(sem, cfg, 9, 9)
    for t_ in range(4): qcvt(sem, t_)
    pre3, fq, _ = place_tiles(schedule(sem, cfg.valu_rate, cfg.valu_burst), cfg)
    for g in pre3: E.extend(g)
    E.extend(fq)
    for qt in range(3): VE(f"v_mov_b32 v{NM(qt)+1}, 0xff800000", [], [NM(qt) + 1])
    se(f"s_mov_b32 s{S_CNT}, 0")
    E.append(label("L_fb_loop"))
    E.append(waitall()); E.append(barrier())
    for c_ in range(2):
        E.append(salu(f"s_add_u32 m0, s{S_W1024}, {c_*4096}", swr=['m0']))
        E.append(salu(f"s_add_u32 s{S_TMP}, s{S_CNT}, {c_*4096}"))
        E.append(salu(f"s_add_u32 s{S_TMP}, s{S_TMP}, s{S_KOFF}"))
        E.append(dma(f"buffer_load_dwordx4 v{VOK}, s[{S_K}:{S_K+3}], s{S_TMP} offen lds", [VOK]))
    E.append(waitall()); E.append(barrier())
    for kt in range(2):
        for t in range(4):
            fr = ACC + (kt * 4 + t) * 4
            E.append(ds_read(f"ds_read_b128 {R(fr,4)}, v{KAD+t} offset:{kt*4096}", KAD + t, rng(fr, 4)))
    for kt in range(2):
        for t in range(4):
            fr = ACC + (kt * 4 + t) * 4
            for qt in range(3):
                d_ = S_(XB, kt, qt)
                E.append(mfma16(d_, fr, Q_(qt, t), d_ if t else None))
    for qt in range(3):
        m = NM(qt) + 1
        for kt in range(2):
            a_ = S_(XB, kt, qt)
            VE(f"v_max3_f32 v{m}, v{m}, v{a_}, v{a_+1}", [m, a_, a_ + 1], [m])
            VE(f"v_max3_f32 v{m}, v{m}, v{a_+2}, v{a_+3}", [m, a_ + 2, a_ + 3], [m])
    se("s_nop 7"); se(f"s_add_u32 s{S_CNT}, s{S_CNT}, 8192"); se(f"s_cmp_lt_u32 s{S_CNT}, 131072"); se("s_cbranch_scc1 L_fb_loop")
    for qt in range(3): xlane_max(E, NM(qt) + 1, NM(qt) + 2)
    for qt in range(3): set_negm(E, qt, NM(qt) + 1)
    E.append(waitall()); E.append(barrier())
    sem = []
    attention(sem, 9, True)
    pre2, fb, _ = place_tiles(schedule(sem, cfg.valu_rate, cfg.valu_burst), cfg)
    cfg.verbose = v
    for g in pre2: E.extend(g)
    E.extend(fb)
    E.append(waitall()); se("s_nop 7"); E.append(barrier())
    for r in sorted(reissue):
        se(f"s_cmp_eq_u32 s{S_ITEM}, {r}"); se(f"s_cbranch_scc0 L_fbn{r}")
        if resume[r][0] == 'O': o_setup(E)
        else: qp_addrs(E, FR + 8)
        epilogue_norm(E, resume[r][0])
        se(f"s_lshl_b32 s73, s{S_W8}, 2"); se(f"s_add_u32 s73, s73, s{S_FL}")
        VE(f"v_mov_b32 v{FR}, s73", [], [FR]); VE(f"v_mov_b32 v{FR+1}, 0", [], [FR + 1])
        E.append(ds_write(f"ds_write_b32 v{FR}, v{FR+1}", [FR, FR + 1]))
        for t, l in reissue[r]:
            for g in tile_dma(t, l, cfg): E.extend(g)
        E.append(waitall()); se("s_nop 7")
        se(f"s_branch L_after{r}")
        E.append(label(f"L_fbn{r}"))
    se("s_endpgm")
    return P + progs[0] + finish(E) + (progs[1] if len(progs) > 1 else [])

import re
def compress(text):
    out = []
    pat = re.compile(r"v_mfma_f32_16x16x32_bf16 v\[(\d+):\d+\], v\[(\d+):\d+\], v\[(\d+):\d+\], (0|v\[(\d+):\d+\])$")
    pt = re.compile(r"ds_read_b64_tr_b16 v\[(\d+):\d+\], v(\d+) offset:(\d+)$")
    for l in text.splitlines():
        s = l.strip()
        m = pat.match(s)
        if m:
            if m.group(4) == '0': out.append(f"MZ {m.group(1)},{m.group(2)},{m.group(3)}")
            elif m.group(5) == m.group(1): out.append(f"MA {m.group(1)},{m.group(2)},{m.group(3)}")
            else: out.append(f"MC {m.group(1)},{m.group(2)},{m.group(3)},{m.group(5)}")
            continue
        m = pt.match(s)
        if m: out.append(f"TR {m.group(1)},{m.group(2)},{m.group(3)}"); continue
        out.append(s)
    return "\n".join(out) + "\n"
MACROS = r""".macro MA d,a,b
v_mfma_f32_16x16x32_bf16 v[\d:\d+3], v[\a:\a+3], v[\b:\b+3], v[\d:\d+3]
.endm
.macro MZ d,a,b
v_mfma_f32_16x16x32_bf16 v[\d:\d+3], v[\a:\a+3], v[\b:\b+3], 0
.endm
.macro MC d,a,b,c
v_mfma_f32_16x16x32_bf16 v[\d:\d+3], v[\a:\a+3], v[\b:\b+3], v[\c:\c+3]
.endm
.macro TR d,a,o
ds_read_b64_tr_b16 v[\d:\d+1], v\a offset:\o
.endm
"""

if __name__ == "__main__":
    import sys
    NAME = "concat_heads__mha_block_cached__mha_block_cached__near_ridge"
    cfg = Cfg(); path = f"cdna_kernels/{NAME}.s"
    for a in sys.argv[1:]:
        if a.startswith("out="): path = a[4:]; continue
        k, v = a.split("=", 1)
        try: v = eval(v)
        except Exception: pass
        setattr(cfg, k, v)
    ref = open(f"cdna_kernels/{NAME}.s.ref").read()
    head = []
    for line in ref.splitlines():
        if not line.startswith(';'): break
        if '@launch' not in line: head.append(line)
    P = gen(cfg)
    nm = NAME + "_kernel"
    s = "\n".join(head) + "\n; @launch grid=(256,1,1) block=(512,1,1) lds=163840\n"
    s += '.amdgcn_target "amdgcn-amd-amdhsa--gfx950"\n' + MACROS + '.text\n'
    s += f".globl {nm}\n.p2align 8\n.type {nm},@function\n{nm}:\n" + compress(render(P))
    s += f""".section .rodata,"a"
.p2align 6
.amdhsa_kernel {nm}
  .amdhsa_next_free_vgpr 256
  .amdhsa_next_free_sgpr 100
  .amdhsa_accum_offset 256
  .amdhsa_group_segment_fixed_size 0
  .amdhsa_kernarg_size 104
  .amdhsa_user_sgpr_count 2
  .amdhsa_user_sgpr_kernarg_segment_ptr 1
  .amdhsa_system_sgpr_workgroup_id_x 1
.end_amdhsa_kernel
"""
    open(path, "w").write(s)
    print("instrs", len(P), "bytes", len(s))
```

```python
import re

def R(b, n=1):
    p = 'v'
    if b >= 256:
        p = 'a'; b -= 256
    return f"{p}{b}" if n == 1 else f"{p}[{b}:{b+n-1}]"

def rng(b, n): return list(range(b, b + n))

class I:
    __slots__ = ('text', 'kind', 'rd', 'wr', 'tag', 'cost', 'srcc', 'passes', 'idx', 'swr', 'srd', 'extra')
    def __init__(self, text, kind, rd=(), wr=(), tag=None, cost=1, srcc=(), passes=4, swr=(), srd=(), extra=None):
        self.text = text; self.kind = kind
        self.rd = frozenset(rd); self.wr = frozenset(wr)
        self.tag = tag; self.cost = cost; self.srcc = frozenset(srcc); self.passes = passes
        self.swr = frozenset(swr); self.srd = frozenset(srd)
        self.extra = extra
    def __repr__(self): return self.text

def mfma16(d, a, b, c):
    ct = '0' if c is None else R(c, 4)
    rd = rng(a, 4) + rng(b, 4) + ([] if c is None else rng(c, 4))
    return I(f"v_mfma_f32_16x16x32_bf16 {R(d,4)}, {R(a,4)}, {R(b,4)}, {ct}", 'mfma', rd, rng(d, 4),
             srcc=([] if c is None else rng(c, 4)), passes=4, extra=(d, c))

def valu(text, rd=(), wr=(), cost=1, swr=(), srd=()): return I(text, 'valu', rd, wr, cost=cost, swr=swr, srd=srd)
def trans(text, rd=(), wr=()): return I(text, 'trans', rd, wr, cost=2)
def perm(text, regs): return I(text, 'perm', regs, regs)
def salu(text, swr=(), srd=()): return I(text, 'salu', swr=swr, srd=srd)
def ds_read(text, addr, wr, tag=None): return I(text, 'dsr', [addr], wr, tag=tag)
def ds_write(text, rd, tag=None): return I(text, 'dsw', rd, (), tag=tag)
def vload(text, rd, wr, tag=None, srd=()): return I(text, 'vld', rd, wr, tag=tag, srd=srd)
def vstore(text, rd, tag=None, wide=True): return I(text, 'vst', rd, (), tag=tag, extra=wide)
def dma(text, rd, tag=None): return I(text, 'dma', rd, (), tag=tag, srd=['m0'])
def raw(text): return I(text, 'raw')
def label(name): return I(name + ':', 'label')
def waittag(vm=(), lg=()): return I('', 'waittag', extra=(frozenset(vm), frozenset(lg)))
def waitall(vm=True, lg=True): return I('', 'waitall', extra=(vm, lg))
def barrier(n=None): return I('s_barrier', 'barrier', tag=n)
def marker(name): return I('', 'marker', tag=name)

VALU_KINDS = ('valu', 'trans', 'perm')

def schedule(sem, valu_rate=1.3, valu_burst=2, lds_per_gap=2, vm_per_gap=1, mfma_dist=9):
    n = len(sem)
    for i, ins in enumerate(sem): ins.idx = i
    lastw = {}; readers = {}
    preds = [None] * n
    for i, ins in enumerate(sem):
        p = set()
        for r in ins.rd:
            if r in lastw: p.add(lastw[r])
        for r in ins.wr:
            if r in lastw: p.add(lastw[r])
            for q in readers.get(r, ()): p.add(q)
        for r in ins.srd:
            k = ('s', r)
            if k in lastw: p.add(lastw[k])
        for r in ins.swr:
            k = ('s', r)
            if k in lastw: p.add(lastw[k])
            for q in readers.get(k, ()): p.add(q)
        p.discard(i)
        preds[i] = p
        for r in ins.rd: readers.setdefault(r, []).append(i)
        for r in ins.srd: readers.setdefault(('s', r), []).append(i)
        for r in ins.wr: lastw[r] = i; readers[r] = []
        for r in ins.swr: lastw[('s', r)] = i; readers[('s', r)] = []
    def cls(ins):
        if ins.kind in VALU_KINDS and ins.extra == 'pin': return None
        if ins.kind in VALU_KINDS: return 'v'
        if ins.kind in ('dsr', 'dsw'): return 'l'
        if ins.kind == 'vld' and ins.extra != 'pin': return 'm'
        return None
    queues = {'v': [], 'l': [], 'm': []}
    fences = []
    for ins in sem:
        c = cls(ins)
        if c: queues[c].append(ins)
        if ins.kind in ('label', 'raw', 'waitall', 'waittag') or (ins.kind == 'marker' and ins.tag == 'fence'):
            fences.append(ins.idx)
    out = []; pos = {}
    heads = {'v': 0, 'l': 0, 'm': 0}
    def emit(ins):
        pos[ins.idx] = len(out); out.append(ins)
    def ready(ins, cur):
        for f in fences:
            if cur < f < ins.idx: return False
        for p in preds[ins.idx]:
            if p not in pos: return False
            pi = sem[p]
            if pi.kind == 'mfma' and (pi.wr & (ins.rd | ins.wr)):
                if len(out) - pos[p] < mfma_dist: return False
            if pi.kind == 'mfma' and ins.kind in VALU_KINDS and (pi.srcc & ins.wr):
                if len(out) - pos[p] < 4: return False
            if pi.kind == 'trans' and ins.kind in VALU_KINDS and (pi.wr & ins.rd) and len(out) - pos[p] < 2: return False
            if pi.kind in VALU_KINDS and ins.kind == 'perm' and (pi.wr & ins.rd) and len(out) - pos[p] < 3: return False
        return True
    tokens = 0.0
    for ins in sem:
        c = cls(ins)
        if c:
            if ins.idx in pos: continue
            assert queues[c][heads[c]] is ins
            emit(ins); heads[c] += 1
            continue
        emit(ins)
        if ins.kind == 'marker' and ins.tag.startswith('rate='):
            valu_rate = float(ins.tag[5:]); valu_burst = max(2, valu_rate)
        if ins.kind == 'mfma':
            tokens = min(tokens + valu_rate, valu_burst + 0.0)
            nl = nm = 0
            progress = True
            while progress:
                progress = False
                q = queues['l']
                if nl < lds_per_gap and heads['l'] < len(q) and ready(q[heads['l']], ins.idx):
                    emit(q[heads['l']]); heads['l'] += 1; nl += 1; progress = True
                q = queues['v']
                if heads['v'] < len(q) and tokens >= 1.0 and ready(q[heads['v']], ins.idx):
                    tokens -= q[heads['v']].cost
                    emit(q[heads['v']]); heads['v'] += 1; progress = True
                q = queues['m']
                if nm < vm_per_gap and heads['m'] < len(q) and ready(q[heads['m']], ins.idx):
                    emit(q[heads['m']]); heads['m'] += 1; nm += 1; progress = True
    return out

def insert_waits(prog, init_vm=()):
    out = []
    vm = list(init_vm)
    lg = []
    def do_wait(nv, nl):
        nonlocal vm, lg
        parts = []
        if nv is not None and nv < len(vm):
            nv = min(nv, 63); parts.append(f"vmcnt({nv})"); vm = vm[len(vm) - nv:] if nv else []
        if nl is not None and nl < len(lg):
            nl = min(nl, 15); parts.append(f"lgkmcnt({nl})"); lg = lg[len(lg) - nl:] if nl else []
        if parts: out.append(I("s_waitcnt " + " ".join(parts), 'wait'))
    for ins in prog:
        if ins.kind == 'waitall':
            a, b = ins.extra
            parts = []
            if a: parts.append("vmcnt(0)"); vm = []
            if b: parts.append("lgkmcnt(0)"); lg = []
            out.append(I("s_waitcnt " + " ".join(parts), 'wait')); continue
        if ins.kind == 'waittag':
            tv, tl = ins.extra
            nv = nl = None
            for k, (w, t) in enumerate(vm):
                if t in tv: nv = len(vm) - 1 - k
            for k, (w, t) in enumerate(lg):
                if t in tl: nl = len(lg) - 1 - k
            do_wait(nv, nl); continue
        if ins.kind == 'setvm':
            vm = list(ins.extra); continue
        if ins.kind in ('dsr', 'dsw') and not ins.text: continue
        touched = ins.rd | ins.wr
        nv = nl = None
        if touched:
            for k, (w, t) in enumerate(vm):
                if w & touched: nv = len(vm) - 1 - k
            for k, (w, t) in enumerate(lg):
                if w & touched: nl = len(lg) - 1 - k
        do_wait(nv, nl)
        out.append(ins)
        if ins.kind in ('vld', 'vst', 'dma'): vm.append((ins.wr, ins.tag))
        if ins.kind in ('dsr', 'dsw'): lg.append((ins.wr, ins.tag))
        if ins.kind == 'stamp':
            out.append(I('s_waitcnt lgkmcnt(0)', 'wait')); lg = []
    return out

def insert_nops(prog):
    out = []
    t = 0
    w_valu = {}; w_trans = {}; w_mfma = {}; c_mfma = {}; st_data = {}
    sw_valu = {}; sw_salu = {}
    MF_RD = {4: 8, 8: 12}; MF_C = {4: 6, 8: 10}; MF_WAR = {4: 3, 8: 7}
    nnop = 0
    for ins in prog:
        if ins.kind in ('marker',) or not ins.text: continue
        if ins.kind in ('label', 'nlabel'):
            out.append(ins); continue
        need = 0
        def req(tp, d):
            nonlocal need
            need = max(need, tp + d + 1)
        k = ins.kind
        if k == 'mfma':
            for r in ins.rd:
                if r in w_valu: req(w_valu[r], 2)
                if r in w_mfma:
                    tp, ps, dbase = w_mfma[r]
                    if r in ins.srcc:
                        if ins.extra[1] == dbase and ps == ins.passes: pass
                        else: req(tp, MF_C[ps])
                    else: req(tp, MF_RD[ps])
            for r in ins.wr:
                if r in w_mfma and r not in ins.srcc:
                    tp, ps, dbase = w_mfma[r]
                    req(tp, MF_C[ps])
        elif k in VALU_KINDS:
            for r in ins.rd | ins.wr:
                if r in w_mfma: req(w_mfma[r][0], MF_RD[w_mfma[r][1]])
            for r in ins.wr:
                if r in c_mfma: req(c_mfma[r][0], MF_WAR[c_mfma[r][1]])
                if r in st_data: req(st_data[r], 2)
            if k != 'trans':
                for r in ins.rd:
                    if r in w_trans: req(w_trans[r], 1)
            if k == 'perm':
                for r in ins.rd:
                    if r in w_valu: req(w_valu[r], 2)
            if 'readfirstlane' in ins.text or 'readlane' in ins.text:
                for r in ins.rd:
                    if r in w_valu: req(w_valu[r], 1)
            for s in ins.srd:
                if s in sw_valu: req(sw_valu[s], 2)
        elif k in ('dsr', 'dsw', 'vld', 'vst', 'dma'):
            for r in ins.rd | ins.wr:
                if r in w_mfma: req(w_mfma[r][0], MF_RD[w_mfma[r][1]])
            for r in ins.wr:
                if r in st_data: req(st_data[r], 1)
            for s in ins.srd:
                if s in sw_valu: req(sw_valu[s], 5)
                if s == 'm0' and s in sw_salu: req(sw_salu[s], 1)
        if need > t:
            d = need - t
            while d > 0:
                m = min(d, 16)
                out.append(I(f"s_nop {m-1}", 'nop')); t += m; d -= m; nnop += 1
        out.append(ins)
        if k == 'mfma':
            for r in ins.wr: w_mfma[r] = (t, ins.passes, ins.extra[0]); w_valu.pop(r, None); w_trans.pop(r, None)
            for r in ins.srcc: c_mfma[r] = (t, ins.passes)
        elif k in VALU_KINDS:
            for r in ins.wr:
                w_valu[r] = t; w_mfma.pop(r, None)
                if k == 'trans': w_trans[r] = t
                else: w_trans.pop(r, None)
            for s in ins.swr: sw_valu[s] = t
        elif k == 'salu':
            for s in ins.swr: sw_salu[s] = t; sw_valu.pop(s, None)
        elif k == 'vst' and ins.extra:
            for r in ins.rd: st_data[r] = t
        elif k in ('dsr', 'vld'):
            for r in ins.wr: w_valu.pop(r, None); w_trans.pop(r, None); w_mfma.pop(r, None)
        if k == 'raw':
            m = re.match(r'\s*s_nop (\d+)', ins.text)
            t += (int(m.group(1)) + 1) if m else 1
        else:
            t += 1
    return out, nnop

def render(prog):
    s = []
    for ins in prog:
        if ins.kind in ('label', 'nlabel'): s.append(ins.text)
        elif ins.text: s.append("  " + ins.text)
    return "\n".join(s) + "\n"
```

```python
from asmlib import *
import math, struct
from mega import (f32bits, ACC, O_, QB, Q_, XB, YB, S_, NEGM, NM, LB, L_, ONES, FR, NFR, KAD, VAD, XF, Rot, lane_id,
                  softmax, xlane_max, set_negm, first_max, fence)
NXF = 4
def XFr(k, qt): return XF + (k % NXF) * 12 + qt * 4

class Cfg:
    valu_rate = 2.0
    valu_burst = 2
    kv_flags = " nt"
    stamps = False
    warm = True
    dma_gap = 2
    xpos0 = 5
    kvdepth = 2
    drop = ''
    verbose = False
    types = 1
    gslp = 8
    fine = False
    qst = (16, 19)
    ost = (14, 24, 34)
    osig = 10
    opoll = 13
    otouch = False
    early = True
    rot = 1
    lchain = False
    pr = 32
    prio = 0
    agap = 10
    lin = None
    qchain = False
    bla = 4
    bfree = 8
    otl = 6
    rate2 = 3
    dwarm = False
    map2 = True
    dT = 6
    pair = False
    kvdelay = 0
    vdepth = None
    dr = ((2, 16), (0, 0))
    steps = None
    w0fl = ' nt'
    x0fl = ''
    x0n = 9
    dsch = (204, 206, 208, 210, 212, 999, 999, 999)
    obar = 2
    tou = 99
    twj = (99, 98)
    tmk = 99
    tstart = False
    tbit = 0
    tcode = 20
    t0 = False
    wfl = ''
    tfl = ''

VOW, VOX, VOV, VOK = 0, 1, 2, 3
WAD = 52; XAD = 60; VOL = 51; QT = 41
SLOT = 8192; RINGB = 40960; REG = 81920; GR = 1024
OACC = 148
def OA(nu, qt): return OACC + (nu * 3 + qt) * 4
VOD = 52; AAD = 57; VOB = 58; LN = 59
BST = 60
C4 = [112, 124, 136, 4]; C8 = [64, 76, 88, 100, 112, 124, 136, 4]
def B_(u, qt): return (C4[u % 4] if u < 12 else C8[(u - 12) % 8]) + qt * 4
GFR = 16; NGFR = 5
OSL = 9216
TA, TB = 40, 41
ODST = {'Q': [QB + 4 * i for i in range(12)], 'A': [O_(2 * t, qt) for qt in range(3) for t in range(4)],
        'O': [64 + 4 * i for i in range(6)] + [100, 104, 108, 88, 92, 96]}

S_X, S_WQ, S_K, S_V, S_O, S_Q, S_WO, S_OUT, S_WOW, S_PK = 40, 44, 48, 52, 56, 80, 16, 20, 24, 28
S_W = 60; S_W1024 = 61; S_W8 = 62; S_GB = 63
S_C1, S_C2 = 64, 65
S_TMP = 66; S_THR = 67; S_SC = 68; S_CNT = 70; S_M = 71
S_DBG = 84; S_GBI = 86; S_RET = 87; S_P1024 = 88; S_OBA = 89
S_WS = 90; S_SA = 92; S_SPIN = 93; S_OBG = 94; S_KOFF = 95; S_FLG = 96; S_ROT = 98; S_ITEM = 99; S_XB = 32; S_FL = 78; S_DW = 79; S_K4 = 33; S_K8 = 34; S_WOFF = 35
QWS = 0x3200000; FLGWS = 0x6400000; PKWS = 0x8000000

def rowoff(r, pr): return (r // pr) * (pr * 16 * 256) + (r % pr) * 256

def tile_dma(tile, loc, cfg):
    kind, it, i = tile
    out = []
    if kind == 'P':
        for c in range(3):
            g = [salu(f"s_add_u32 m0, s{S_P1024}, {loc + c * 1024}", swr=['m0']),
                 salu(f"s_mov_b32 s{S_TMP}, {(it * 2048 + i * 32) * 1152}")]
            if c == 2: g.append(salu("s_mov_b64 exec, 0xffff"))
            g.append(dma(f"buffer_load_dwordx4 v{VOD+c}, s[{S_WO}:{S_WO+3}], s{S_TMP} offen{cfg.wfl} lds", [VOD + c], tag=tile))
            if c == 2:
                r = salu("s_mov_b64 exec, -1"); r.tag = tile; g.append(r)
            out.append(g)
        return out
    for c in range(3 if kind == 'X' else 2):
        mv = None; pre_ = []
        if kind == 'X': goff = c * 32 * 1152 + i * 128; srd = S_X; vo = VOX; fl = (cfg.x0fl if (it == 0 and i < cfg.x0n) else cfg.wfl)
        elif kind == 'W':
            goff = (i * 32 + c * 16) * 8192; srd = S_WQ; vo = VOW; fl = (cfg.w0fl if it == 0 else cfg.wfl)
            if it == 9: mv = salu(f"s_add_u32 s{S_TMP}, s{S_WOFF}, {goff}")
            else: goff += it * 4096
        else:
            goff = i * cfg.pr * 256 + rowoff(16 * c, cfg.pr); srd = S_K if kind == 'K' else S_V; vo = VOK if kind == 'K' else VOV; fl = cfg.kv_flags
            if it == 9: mv = salu(f"s_add_u32 s{S_TMP}, s{S_KOFF}, {goff}")
            elif cfg.rot:
                pre_ = [salu(f"s_add_u32 s{S_TMP}, s{S_ROT}, {goff}"), salu(f"s_and_b32 s{S_TMP}, s{S_TMP}, 0x1ffff")]
                mv = salu(f"s_add_u32 s{S_TMP}, s{S_TMP}, {it * 16 * 131072}") if it else pre_.pop()
            else: goff += it * 16 * 131072
        out.append([salu(f"s_add_u32 m0, s{S_W1024}, {loc + c * 4096}", swr=['m0'])] + pre_ + [
                    mv or salu(f"s_mov_b32 s{S_TMP}, {goff}"),
                    dma(f"buffer_load_dwordx4 v{vo}, s[{srd}:{srd+3}], s{S_TMP} offen{fl} lds", [vo], tag=tile)])
    return out

def lds_read(op, dst, n, tile, sel, inner):
    ad = {'K': KAD, 'V': VAD, 'W': WAD, 'X': XAD, 'P': AAD}[tile[0]] + sel
    return I('?', 'dsr', [ad], rng(dst, n), tag=tile, extra=(op, dst, n, ad, inner))

def resolve(ins, loc):
    op, dst, n, ad, inner = ins.extra
    off = loc - RINGB if ins.tag[0] in 'VW' else loc
    ins.text = f"{op} {R(dst, n)}, v{ad} offset:{off + inner}"

def granules(kind, l):
    size = {'K': SLOT, 'V': SLOT, 'W': SLOT, 'X': 12288, 'F': 1024, 'P': OSL, 'R': REG, 'D': 4096, 'E': 4096}[kind]
    g = list(range(l // GR, (l + size) // GR))
    return g
CAND = {'K': [i * SLOT for i in range(5)], 'V': [RINGB + i * SLOT for i in range(5)], 'W': [RINGB + i * SLOT for i in range(5)],
        'X': [0, 12288, 24576], 'D': [4 * SLOT], 'E': [36864], 'F': [36864], 'P': [i * OSL for i in range(7)], 'R': [0]}

def place_tiles(prog, cfg, earliest=None):
    earliest = earliest or {}
    nb = -1; order = {}; last = {}; barpos = []; mark = {}
    for i, ins in enumerate(prog):
        if ins.kind == 'barrier' and ins.tag is not None: nb += 1; barpos.append(i)
        if ins.kind == 'marker': mark[ins.tag] = i
        if ins.kind in ('dsr', 'dsw') and ins.tag is not None:
            assert nb >= 0
            order.setdefault(ins.tag, (nb, i)); last[ins.tag] = nb
    first = {t: order[t][0] for t in order}
    nbar = nb + 1
    dl = {t: barpos[first[t]] for t in first}
    freeat = [-1] * 80
    loc = {}; issue_at = {}
    for t in sorted(first, key=lambda t: order[t]):
        kind = t[0]
        ft = lambda l: max(freeat[g] for g in granules(kind, l))
        cands = CAND[kind]
        if kind == 'K' and t[1] < 2 and cfg.dwarm: cands = cands[:4]
        l = min(cands, key=lambda l: (ft(l), cands.index(l)))
        f = ft(l)
        if kind in 'FRDE': assert f <= first[t], (t, f, first[t])
        else: assert f < first[t] or f == -1, (t, l, f, first[t])
        loc[t] = l
        if kind not in 'FRDE':
            d_ = cfg.kvdepth if kind == 'K' else (cfg.vdepth or cfg.kvdepth)
            if kind in 'KV' and t[1] < 2 and cfg.dr[t[1]][0] <= t[2] < cfg.dr[t[1]][1]: d_ = 1
            if cfg.pair and kind in 'KV' and (first[t] + (kind == 'V')) % 2 == 1: d_ += 1
            issue_at[t] = max(f, first[t] - d_) if kind in 'KV' else f
            if kind in 'KV' and t[1] < 2 and cfg.lin:
                kvs = sorted([u for u in first if u[0] in 'KV' and u[1] == t[1]], key=lambda u: order[u])
                n_ = kvs.index(t); b0 = first[kvs[0]] - cfg.lin[0]; b1 = first[kvs[-1]] - cfg.lin[1]
                issue_at[t] = min(first[t] - 1, max(f, b0 + int(n_ * (b1 - b0 + 1) / len(kvs))))
        for g in granules(kind, l): freeat[g] = last[t] + 1
    for ins in prog:
        if ins.kind == 'dsr' and ins.tag is not None and ins.tag[0] not in 'FRDE': resolve(ins, loc[ins.tag])
        if ins.kind in ('dsr', 'dsw', 'raw') and ins.tag is not None and ins.tag[0] == 'F': ins.text = ins.text.replace('@F', str(loc[ins.tag]))
    need = [[] for _ in range(nbar)]; free = [[] for _ in range(nbar + 1)]
    for t in first:
        if t[0] not in 'FRDE': need[first[t]].append(t)
        free[last[t] + 1].append(t)
    issue = [[] for _ in range(nbar)]; pre = []
    for t in sorted(issue_at, key=lambda t: order[t]):
        if issue_at[t] < 0 and (t[0], t[1]) not in earliest: pre.extend(tile_dma(t, loc[t], cfg))
        else: issue[max(0, issue_at[t])].append(t)
    out = []; nb = -1; pend = []; cnt = 0; held = []; since = 0
    def push(gs):
        pend.extend(gs); pend.sort(key=lambda g: order[g[-1].tag])
    ok = lambda t, i: earliest.get((t[0], t[1])) is None or i >= mark[earliest[(t[0], t[1])]]
    for i, ins in enumerate(prog):
        for t in [t for t in held if ok(t, i)]:
            held.remove(t); push(tile_dma(t, loc[t], cfg))
        while pend and dl[pend[0][-1].tag] <= i: out.extend(pend.pop(0))
        if ins.kind == 'marker' and ins.tag.startswith('flush'):
            while pend: out.extend(pend.pop(0))
        if ins.kind == 'barrier' and ins.tag is not None:
            nb += 1; since = 0
            assert not any(t in need[nb] for t in held), held
            out.append(waittag(vm=need[nb] + (ins.extra or []), lg=free[nb]))
            out.append(ins)
            for t in issue[nb]:
                if ok(t, i): push(tile_dma(t, loc[t], cfg))
                else: held.append(t)
            continue
        out.append(ins)
        if ins.kind == 'mfma': since += 1
        if ins.kind == 'mfma' and pend:
            t0_ = pend[0][-1].tag
            if t0_[0] in 'KV' and first[t0_] - nb >= 2 and since < cfg.kvdelay: continue
            cnt += 1
            if cnt % (cfg.agap if (cfg.agap and t0_[0] in 'KV' and first[t0_] - nb >= 2) else cfg.dma_gap) == 0: out.extend(pend.pop(0))
    assert not pend and not held
    assert cfg.kvdepth + cfg.pair <= 3
    if cfg.verbose:
        for t in sorted(first, key=lambda t: order[t]): print(t, 'loc', loc[t] // GR, 'issue', issue_at.get(t), 'first', first[t], 'last', last[t])
    return pre, out, loc

def qk(sem, F, it, j, buf, usem):
    for kt in range(2):
        for t in range(4):
            fr = F.next()
            sem.append(lds_read("ds_read_b128", fr, 4, ('K', it, j), t, kt * 4096))
            for qt in range(3):
                d = S_(buf, kt, qt)
                sem.append(mfma16(d, fr, Q_(qt, t), d if t > 0 else (NM(qt) if usem else None)))

def pv(sem, F, it, j, buf, hook=None):
    first = (j == 0)
    for qt in range(3): sem.append(mfma16(L_(qt), ONES, S_(buf, 0, qt), None if first else L_(qt)))
    for s in range(8):
        if hook and j == 15 and s == 3: hook(sem, 16, None)
        fr = F.next()
        for h in range(2): sem.append(lds_read("ds_read_b64_tr_b16", fr + 2 * h, 2, ('V', it, j), s, h * 4096))
        for qt in range(3): sem.append(mfma16(O_(s, qt), fr, S_(buf, 0, qt), None if first else O_(s, qt)))

def attention(sem, it, preset, hook=None, F=None, cvt=False, cfg=None):
    F = F or Rot(FR, NFR); bufs = [XB, YB]
    sem.append(barrier(0))
    if cvt:
        for t in range(4):
            qcvt(sem, t)
            for kt in range(2):
                fr = F.next()
                sem.append(lds_read("ds_read_b128", fr, 4, ('K', it, 0), t, kt * 4096))
                for qt in range(3):
                    d = S_(bufs[0], kt, qt)
                    sem.append(mfma16(d, fr, Q_(qt, t), d if t > 0 else None))
    else: qk(sem, F, it, 0, bufs[0], preset)
    qk(sem, F, it, 1, bufs[1], preset)
    if not preset: first_max(sem, bufs[0])
    for j in range(16):
        softmax(sem, bufs[j % 2], (not preset) and j < 2)
        if j < 15:
            b = barrier(0); sem.append(b)
        if hook: hook(sem, j, b)
        pv(sem, F, it, j, bufs[j % 2], hook)
        if j + 2 < 16: qk(sem, F, it, j + 2, bufs[j % 2], True)

def qproj(sem, cfg, it, xid, hook=None, F=None):
    F = F or Rot(FR, NFR)
    XPOS = {}
    for stp in range(9):
        for qt in range(3): XPOS.setdefault(0 if stp == 0 else (12 + qt if (stp == 1 and it == 0 and cfg.early) else 16 * (stp - 1) + cfg.xpos0 + qt), []).append((stp, qt))
    for k in range(18):
        if k % 2 == 0:
            b = barrier(0); sem.append(b)
            if hook: hook(sem, k, b)
        if k == 1 and it == 0 and cfg.early: sem.append(fence()); sem.append(barrier(0)); sem.append(fence())
        for T in range(8):
            if hook and k == 0 and T == 3: hook(sem, -1, None)
            if hook and T == cfg.dT: hook(sem, 1000 + k, None)
            if k == (16 if cfg.lchain else 17) and T == 0: sem.append(marker(f'rate={cfg.rate2}'))
            for (stp, qt) in XPOS.get(k * 8 + T, []):
                for kk in range(2): sem.append(lds_read("ds_read_b128", XFr(2 * stp + kk, qt), 4, ('X', xid, stp), kk, qt * 2048))
            if cfg.qchain or (cfg.lchain and k >= 16):
                G2 = (k % 2) * 8 + T; T2, kk = G2 // 2, G2 % 2; k2 = (k & ~1) + kk
                fr = F.next()
                for h in range(2): sem.append(lds_read("ds_read_b64_tr_b16", fr + 2 * h, 2, ('W', it, k2), T2, h * 1024))
                if kk == 0: fr0 = fr
                else:
                    for qt in range(3):
                        sem.append(mfma16(O_(T2, qt), fr0, XFr(k2 - 1, qt), None if k2 == 1 else O_(T2, qt)))
                        sem.append(mfma16(O_(T2, qt), fr, XFr(k2, qt), O_(T2, qt)))
                continue
            fr = F.next()
            for h in range(2): sem.append(lds_read("ds_read_b64_tr_b16", fr + 2 * h, 2, ('W', it, k), T, h * 1024))
            for qt in range(3): sem.append(mfma16(O_(T, qt), fr, XFr(k, qt), None if k == 0 else O_(T, qt)))

def qcvt(sem, t):
    for qt in range(3):
        a_ = O_(2 * t, qt); b_ = O_(2 * t + 1, qt); q = Q_(qt, t)
        for r in (a_, a_ + 2, b_, b_ + 2):
            sem.append(valu(f"v_pk_mul_f32 {R(r,2)}, {R(r,2)}, s[{S_SC}:{S_SC+1}]", [r, r + 1], [r, r + 1]))
        sem.append(valu(f"v_cvt_pk_bf16_f32 v{q}, v{a_}, v{a_+1}", [a_, a_ + 1], [q]))
        sem.append(valu(f"v_cvt_pk_bf16_f32 v{q+1}, v{a_+2}, v{a_+3}", [a_ + 2, a_ + 3], [q + 1]))
        sem.append(valu(f"v_cvt_pk_bf16_f32 v{q+2}, v{b_}, v{b_+1}", [b_, b_ + 1], [q + 2]))
        sem.append(valu(f"v_cvt_pk_bf16_f32 v{q+3}, v{b_+2}, v{b_+3}", [b_ + 2, b_ + 3], [q + 3]))
    for qt in range(3):
        q = Q_(qt, t)
        for x in range(2): sem.append(perm(f"v_permlane32_swap_b32 v{q+x}, v{q+2+x}", [q + x, q + 2 + x]))
    for qt in range(3):
        q = Q_(qt, t)
        for x in range(2): sem.append(perm(f"v_permlane16_swap_b32 v{q+x}, v{q+2+x}", [q + x, q + 2 + x]))

def epilogue_norm(sem, mode):
    D = ODST[mode]
    for qt in range(3):
        l = L_(qt)
        sem.append(trans(f"v_rcp_f32 v{l+2}, v{l}", [l], [l + 2]))
        sem.append(valu(f"v_mov_b32 v{l+3}, v{l+2}", [l + 2], [l + 3]))
    for t in range(4):
        for qt in range(3):
            l = L_(qt); d = D[frag_slot(mode, qt, t)]
            a = O_(2 * t, qt); b = O_(2 * t + 1, qt)
            for r in (a, a + 2, b, b + 2):
                sem.append(valu(f"v_pk_mul_f32 {R(r,2)}, {R(r,2)}, {R(l+2,2)}", [r, r + 1, l + 2, l + 3], [r, r + 1]))
            sem.append(valu(f"v_cvt_pk_bf16_f32 v{d}, v{a}, v{a+1}", [a, a + 1], [d]))
            sem.append(valu(f"v_cvt_pk_bf16_f32 v{d+1}, v{a+2}, v{a+3}", [a + 2, a + 3], [d + 1]))
            sem.append(valu(f"v_cvt_pk_bf16_f32 v{d+2}, v{b}, v{b+1}", [b, b + 1], [d + 2]))
            sem.append(valu(f"v_cvt_pk_bf16_f32 v{d+3}, v{b+2}, v{b+3}", [b + 2, b + 3], [d + 3]))
def frag_slot(mode, qt, t): return qt * 4 + t if mode != 'O' else t * 3 + qt

def o_addr(p, T, item):
    lane_id(p, T)
    p.append(raw(f"s_add_u32 s72, s{S_OBA}, {item*65536}"))
    p.append(valu(f"v_lshl_add_u32 v{T}, v{T}, 4, s72", [T], [T]))
def o_store_list(T, mode, tag):
    L = []
    for t in range(4):
        for qt in range(3):
            so = ['0', f"s{S_C1}", f"s{S_C2}"][qt]
            a = ODST[mode][frag_slot(mode, qt, t)]
            L.append(vstore(f"buffer_store_dwordx4 {R(a,4)}, v{T}, s[{S_O}:{S_O+3}], {so} offen offset:{t*1024} sc1", rng(a, 4) + [T], tag=tag))
    return L
def q_addr(p, T):
    lane_id(p, T)
    p.append(raw(f"s_mul_i32 s72, s{S_W8}, 12288"))
    p.append(valu(f"v_lshl_add_u32 v{T}, v{T}, 4, s72", [T], [T]))
def q_list(T, store):
    L = []
    for qt in range(3):
        so = ['0', f"s{S_K4}", f"s{S_K8}"][qt]
        for t in range(4):
            q = Q_(qt, t)
            if store: L.append(vstore(f"buffer_store_dwordx4 {R(q,4)}, v{T}, s[{S_Q}:{S_Q+3}], {so} offen offset:{t*1024}", rng(q, 4) + [T]))
            else: L.append(vload(f"buffer_load_dwordx4 {R(q,4)}, v{T}, s[{S_Q}:{S_Q+3}], {so} offen offset:{t*1024} sc1", [T], rng(q, 4)))
    return L
def sprinkle(sem, items, start, every):
    out = []; c = 0; items = list(items)
    for x in sem:
        out.append(x)
        if x.kind == 'mfma':
            c += 1
            if items and c >= start and (c - start) % every == 0: out.append(items.pop(0))
    assert not items
    sem[:] = out

def sprinkle_b(sem, items, pos, first=0):
    out = []; c = 0; nb = -1; items = list(items)
    for x in sem:
        out.append(x)
        if x.kind == 'barrier': c = 0; nb += 1
        if x.kind == 'mfma':
            c += 1
            if items and nb >= first and c in pos: out.append(items.pop(0))
    assert not items
    sem[:] = out

def dma_offs(p, tmp):
    a, b, c, d, e, LANE = range(tmp, tmp + 6)
    V = lambda t, rd, wr: p.append(valu(t, rd, wr))
    lane_id(p, LANE)
    V(f"v_lshrrev_b32 v{d}, 4, v{LANE}", [LANE], [d])
    V(f"v_lshl_add_u32 v{a}, s{S_W}, 2, v{d}", [d], [a])
    V(f"v_and_b32 v{b}, 15, v{LANE}", [LANE], [b])
    V(f"v_and_b32 v{c}, 3, v{a}", [a], [c])
    V(f"v_lshrrev_b32 v{e}, 3, v{a}", [a], [e])
    V(f"v_lshl_add_u32 v{c}, v{e}, 2, v{c}", [e, c], [c])
    V(f"v_lshlrev_b32 v{c}, 1, v{c}", [c], [c])
    V(f"v_xor_b32 v{c}, v{c}, v{b}", [c, b], [c])
    V(f"v_lshlrev_b32 v{c}, 4, v{c}", [c], [c])
    V(f"v_lshl_add_u32 v{VOW}, v{a}, 13, v{c}", [a, c], [VOW])
    for t in (f"s_lshr_b32 s73, s{S_W8}, 2", "s_mul_i32 s73, s73, 96", f"s_lshl_b32 s74, s{S_W}, 3", "s_add_u32 s73, s73, s74",
              f"s_and_b32 s74, s{S_W}, 1", "s_lshl_b32 s74, s74, 2"): p.append(raw(t))
    V(f"v_lshrrev_b32 v{c}, 3, v{LANE}", [LANE], [c])
    V(f"v_add_u32 v{c}, s73, v{c}", [c], [c])
    V(f"v_mul_u32_u24 v{c}, 1152, v{c}", [c], [c])
    V(f"v_and_b32 v{e}, 7, v{LANE}", [LANE], [e])
    V(f"v_xor_b32 v{e}, v{e}, v{d}", [e, d], [e])
    V(f"v_xor_b32 v{e}, s74, v{e}", [e], [e])
    V(f"v_lshl_add_u32 v{VOX}, v{e}, 4, v{c}", [e, c], [VOX])

def att_addrs(p, tmp):
    a, b, c, d = tmp, tmp + 1, tmp + 2, tmp + 3
    V = lambda t, rd, wr: p.append(valu(t, rd, wr))
    lane_id(p, a)
    V(f"v_and_b32 v{b}, 15, v{a}", [a], [b])
    V(f"v_lshrrev_b32 v{c}, 4, v{a}", [a], [c])
    V(f"v_xor_b32 v{d}, v{b}, v{c}", [b, c], [d])
    V(f"v_lshlrev_b32 v{d}, 4, v{d}", [d], [d])
    V(f"v_lshl_add_u32 v{d}, v{b}, 8, v{d}", [b, d], [d])
    V(f"v_add_u32 v{KAD}, s{S_GB}, v{d}", [d], [KAD])
    for t in range(1, 4): V(f"v_xor_b32 v{KAD+t}, {t*64}, v{KAD}", [KAD], [KAD + t])
    V(f"v_lshrrev_b32 v{b}, 2, v{a}", [a], [b])
    V(f"v_and_b32 v{c}, 3, v{a}", [a], [c])
    V(f"v_lshlrev_b32 v{c}, 3, v{c}", [c], [c])
    V(f"v_lshl_add_u32 v{c}, v{b}, 8, v{c}", [b, c], [c])
    V(f"v_and_b32 v{d}, 7, v{b}", [b], [d])
    V(f"v_lshl_add_u32 v{c}, v{d}, 5, v{c}", [d, c], [c])
    V(f"v_add_u32 v{c}, {RINGB}, v{c}", [c], [c])
    V(f"v_add_u32 v{VAD}, s{S_GB}, v{c}", [c], [VAD])
    for s in range(1, 8): V(f"v_xor_b32 v{VAD+s}, {s*32}, v{VAD}", [VAD], [VAD + s])
    V(f"v_and_b32 v{b}, 3, v{a}", [a], [b])
    V(f"v_mov_b32 v{c}, 0x3f803f80", [], [c])
    p.append(valu(f"v_cmp_eq_u32 vcc, 0, v{b}", [b], [], swr=['vcc']))
    p.append(valu(f"v_cndmask_b32 v{ONES}, 0, v{c}, vcc", [c], [ONES], srd=['vcc']))
    for e in range(1, 4): V(f"v_mov_b32 v{ONES+e}, v{ONES}", [ONES], [ONES + e])

def qp_addrs(p, tmp):
    a, b, c, d, e = range(tmp, tmp + 5)
    V = lambda t, rd, wr: p.append(valu(t, rd, wr))
    lane_id(p, e)
    V(f"v_and_b32 v{b}, 15, v{e}", [e], [b])
    V(f"v_lshrrev_b32 v{d}, 4, v{e}", [e], [d])
    V(f"v_lshrrev_b32 v{c}, 1, v{b}", [b], [c])
    V(f"v_xor_b32 v{c}, v{c}, v{d}", [c, d], [c])
    V(f"v_lshlrev_b32 v{c}, 4, v{c}", [c], [c])
    V(f"v_lshl_add_u32 v{c}, v{b}, 7, v{c}", [b, c], [c])
    V(f"v_add_u32 v{XAD}, s{S_XB}, v{c}", [c], [XAD])
    V(f"v_xor_b32 v{XAD+1}, 64, v{XAD}", [XAD], [XAD + 1])
    V(f"v_lshrrev_b32 v{a}, 2, v{e}", [e], [a])
    V(f"v_and_b32 v{a}, 3, v{a}", [a], [a])
    V(f"v_lshl_add_u32 v{b}, v{d}, 3, v{a}", [d, a], [b])
    V(f"v_and_b32 v{c}, 1, v{d}", [d], [c])
    V(f"v_lshl_add_u32 v{c}, v{c}, 2, v{a}", [c, a], [c])
    V(f"v_lshlrev_b32 v{c}, 5, v{c}", [c], [c])
    V(f"v_lshl_add_u32 v{c}, v{b}, 8, v{c}", [b, c], [c])
    V(f"v_and_b32 v{e}, 3, v{e}", [e], [e])
    V(f"v_lshl_add_u32 v{c}, v{e}, 3, v{c}", [e, c], [c])
    V(f"v_add_u32 v{c}, {RINGB}, v{c}", [c], [c])
    V(f"v_add_u32 v{WAD}, s{S_GB}, v{c}", [c], [WAD])
    for T in range(1, 8): V(f"v_xor_b32 v{WAD+T}, {T*32}, v{WAD}", [WAD], [WAD + T])

def op_addrs(p):
    a, b, c = 60, 61, 62
    V = lambda t, rd, wr: p.append(valu(t, rd, wr))
    lane_id(p, LN)
    p.append(raw("s_movk_i32 s75, 3641")); p.append(raw(f"s_mul_i32 s73, s{S_W}, 144"))
    for cc in range(3):
        V(f"v_add_u32 v{a}, s73, v{LN}", [LN], [a])
        if cc: V(f"v_add_u32 v{a}, {64*cc}, v{a}", [a], [a])
        V(f"v_mul_u32_u24 v{b}, s75, v{a}", [a], [b])
        V(f"v_lshrrev_b32 v{b}, 16, v{b}", [b], [b])
        V(f"v_mul_u32_u24 v{c}, 18, v{b}", [b], [c])
        V(f"v_sub_u32 v{c}, v{a}, v{c}", [a, c], [c])
        V(f"v_mul_u32_u24 v{b}, 1152, v{b}", [b], [b])
        V(f"v_lshl_add_u32 v{VOD+cc}, v{c}, 4, v{b}", [c, b], [VOD + cc])
    V(f"v_lshrrev_b32 v{a}, 2, v{LN}", [LN], [a])
    V(f"v_mul_u32_u24 v{a}, 288, v{a}", [a], [a])
    V(f"v_and_b32 v{b}, 3, v{LN}", [LN], [b])
    V(f"v_lshl_add_u32 v{a}, v{b}, 3, v{a}", [b, a], [a])
    V(f"v_add_u32 v{AAD}, s{S_GB}, v{a}", [a], [AAD])

def touch(p, t0, dst, srd, nshare_expr, per, soff, mode):
    w1, w2, w0 = t0, t0 + 1, t0 + 2
    V = lambda t, rd, wr: p.append(valu(t, rd, wr))
    lane_id(p, w2)
    for t in nshare_expr: p.append(raw(t))
    p.append(raw(f"s_mul_i32 s72, s72, {per}"))
    p.append(raw(f"s_mov_b32 s73, {soff}"))
    n = 1 if per <= 64 else 2
    h = per // n
    for i in range(n):
        V(f"v_min_u32 v{w1}, {h-1}, v{w2}", [w2], [w1])
        V(f"v_add_u32 v{w1}, s72, v{w1}", [w1], [w1])
        if mode == 'wq':
            V(f"v_and_b32 v{w0}, 1, v{w1}", [w1], [w0])
            V(f"v_lshrrev_b32 v{w1}, 1, v{w1}", [w1], [w1])
            V(f"v_lshlrev_b32 v{w1}, 13, v{w1}", [w1], [w1])
            V(f"v_lshl_add_u32 v{w1}, v{w0}, 7, v{w1}", [w0, w1], [w1])
        else: V(f"v_lshlrev_b32 v{w1}, 7, v{w1}", [w1], [w1])
        p.append(vload(f"buffer_load_dword v{dst+i}, v{w1}, s[{srd}:{srd+3}], s73 offen{TFL[0]}", [w1], [dst + i]))
        if i + 1 < n: p.append(raw(f"s_add_u32 s72, s72, {h}"))

def touch_wq(p, t0, dst, it):
    if MAP2[0]: touch(p, t0, dst, S_WQ, [f"s_and_b32 s72, s{S_GBI}, 7", "s_lshl_b32 s72, s72, 2", f"s_add_u32 s72, s72, s{S_W}"], 36, it * 4096, 'wq')
    else: touch(p, t0, dst, S_WQ, [f"s_and_b32 s72, s{S_GBI}, 3", "s_lshl_b32 s72, s72, 2", f"s_add_u32 s72, s72, s{S_W}"], 72, it * 4096, 'wq')
def touch_wo(p, t0, dst, st, nsh):
    sh = ["s_lshr_b32 s72, s2, 3"] + (["s_lshr_b32 s72, s72, 1"] if nsh == 16 else []) + ["s_lshl_b32 s72, s72, 3", f"s_add_u32 s72, s72, s{S_W8}"]
    per = 18432 // (nsh * 8)
    for r in range(per // 72):
        touch(p, t0, dst + 2 * r, S_WOW, sh, 72, st * 2048 * 1152 + r * nsh * 8 * 72 * 128, 'lin')

def touch_wo_raw(p, st):
    for h in range(2):
        for t in ("s_lshr_b32 s72, s2, 3", "s_lshl_b32 s72, s72, 3", f"s_add_u32 s72, s72, s{S_W8}", "s_mul_i32 s72, s72, 72", f"s_add_u32 s72, s72, {36*h}",
                  f"s_mov_b32 s73, {st*2048*1152}",
                  "v_mbcnt_lo_u32_b32 v0, -1, 0", "v_mbcnt_hi_u32_b32 v0, -1, v0", "v_min_u32 v0, 35, v0", "v_add_u32 v0, s72, v0", "v_lshlrev_b32 v0, 7, v0",
                  f"buffer_load_dword v1, v0, s[{S_WOW}:{S_WOW+3}], s73 offen{TFL[0]}"): p.append(raw(t))

def touch_mall(p, t0, dst, ty=0):
    sh = ["s_and_b32 s72, s2, 3", "s_lshr_b32 s73, s2, 3", "s_lshl_b32 s73, s73, 2", "s_add_u32 s72, s72, s73", "s_lshl_b32 s72, s72, 3", f"s_add_u32 s72, s72, s{S_W8}"]
    touch(p, t0, dst, S_WOW, sh, 36, 0, 'lin')
    touch(p, t0, dst + 1, S_WQ, [f"s_and_b32 s72, s{S_GBI}, 15", "s_lshl_b32 s72, s72, 2", f"s_add_u32 s72, s72, s{S_W}"], 18, 4096 * (1 - ty), 'wq')

def signal(p, ta, tb, val, lab, atomic=False):
    p.append(raw(f"s_cmp_lg_u32 s{S_W8}, 0")); p.append(raw(f"s_cbranch_scc1 {lab}"))
    p.append(raw(f"s_lshl_b32 s73, s{S_GBI if atomic else S_M}, 2"))
    p.append(valu(f"v_mov_b32 v{ta}, s73", [], [ta]))
    p.append(valu(f"v_mov_b32 v{tb}, {val}", [], [tb]))
    p.append(raw("s_mov_b64 exec, 1"))
    if atomic: p.append(raw(f"global_atomic_add v{ta}, v{tb}, s[{S_DBG}:{S_DBG+1}] sc1"))
    else: p.append(raw(f"global_store_dword v{ta}, v{tb}, s[{S_FLG}:{S_FLG+1}] sc0 sc1"))
    p.append(raw("s_mov_b64 exec, -1"))
    p.append(label(lab))

def poll(p, lab, ta, tb, base, off, nl, need, slp):
    for t in (f"s_mov_b32 s{S_SPIN}, 0", f"v_mbcnt_lo_u32_b32 v{tb}, -1, 0", f"v_lshl_add_u32 v{tb}, v{tb}, 2, {off}", f"s_mov_b64 exec, {(1 << nl) - 1}"): p.append(raw(t))
    p.append(label(lab + "_l"))
    for t in (f"global_load_dword v{ta}, v{tb}, s[{base}:{base+1}] sc0 sc1", "s_waitcnt vmcnt(0)", f"v_cmp_gt_u32 vcc, {need}, v{ta}",
              f"s_add_u32 s{S_SPIN}, s{S_SPIN}, 1", "s_nop 4", "s_cmp_eq_u64 vcc, 0", f"s_cbranch_scc1 {lab}_d",
              f"s_sleep {slp}", f"s_cmp_lt_u32 s{S_SPIN}, 100000", f"s_cbranch_scc1 {lab}_l"): p.append(raw(t))
    p.append(label(lab + "_d"))
    p.append(raw("s_mov_b64 exec, -1"))

def stampm(p, cfg, ta, tb):
    if not cfg.stamps: return
    p.append(I("s_memrealtime s[76:77]", 'stamp'))
    p.append(valu(f"v_mov_b32 v{ta}, s{S_SA}", [], [ta]))
    p.append(valu(f"v_mov_b32 v{tb}, s76", [], [tb]))
    p.append(raw(f"global_store_dword v{ta}, v{tb}, s[{S_WS}:{S_WS+1}]"))
    p.append(raw(f"s_add_u32 s{S_SA}, s{S_SA}, 4"))
    p.append(raw("s_nop 1"))

DROP = ['']
TFL = ['']
MAP2 = [True]
def finish(p):
    p = insert_waits(p)
    if DROP[0]:
        for i in p:
            if i.kind == 'dma' and i.tag and i.tag[0] in DROP[0]: i.text = 's_nop 0'
            if 'B' in DROP[0] and i.kind == 'vld' and f's[{S_O}:' in i.text: i.text = 's_nop 0'
            if 'S' in DROP[0] and i.kind == 'vst' and i.tag == ('OST', 1): i.text = 's_nop 0'
            if 'T' in DROP[0] and i.kind == 'vst' and i.tag == ('OST', 0): i.text = 's_nop 0'
            if 's_cbranch_scc1 L_fallback' in i.text: i.text = 's_nop 0'
    p, n = insert_nops(p); return p

def nf(L):
    for x in L:
        if x.kind == 'raw': x.kind = 'salu'
        elif x.kind == 'label': x.kind = 'nlabel'
        elif x.kind in ('valu', 'vld'): x.extra = 'pin'
    return L

def flag_write(L, n, T0, T1):
    L.append(valu(f"v_cmp_nge_f32 vcc, s{S_THR}, v{L_(0)}", [L_(0)], [], swr=['vcc']))
    L.append(valu(f"v_cmp_nge_f32 s[72:73], s{S_THR}, v{L_(1)}", [L_(1)], [], swr=['s72']))
    L.append(valu(f"v_cmp_nge_f32 s[74:75], s{S_THR}, v{L_(2)}", [L_(2)], [], swr=['s74']))
    for t in ("s_nop 4", "s_or_b64 s[72:73], s[72:73], s[74:75]", "s_or_b64 s[72:73], s[72:73], vcc", "s_cmp_lg_u64 s[72:73], 0",
              "s_cselect_b32 s72, 1, 0", f"s_lshl_b32 s73, s{S_W8}, 2"): L.append(raw(t))
    L.append(valu(f"v_mov_b32 v{T0}, s73", [], [T0]))
    L.append(valu(f"v_mov_b32 v{T1}, s72", [], [T1]))
    L.append(I(f"ds_write_b32 v{T0}, v{T1} offset:@F", 'dsw', [T0, T1], tag=('F', n, 0)))
def flag_read(L, n, T0):
    lane_id(L, T0)
    L.append(valu(f"v_and_b32 v{T0}, 7, v{T0}", [T0], [T0]))
    L.append(valu(f"v_lshlrev_b32 v{T0}, 2, v{T0}", [T0], [T0]))
    L.append(I(f"ds_read_b32 v{T0}, v{T0} offset:@F", 'dsr', [T0], [T0], tag=('F', n, 0)))
def flag_check(L, n, T0):
    L.append(valu(f"v_cmp_ne_u32 vcc, 0, v{T0}", [T0], [], swr=['vcc']))
    L.append(I(f"s_mov_b32 s{S_FL}, @F", 'raw', tag=('F', n, 0))); L.append(raw(f"s_mov_b32 s{S_ITEM}, {n}"))
    for t in ("s_nop 3", "s_cmp_lg_u64 vcc, 0", "s_cbranch_scc1 L_fallback"): L.append(raw(t))

def apoll_issue(L, lab, ta, tb, base, off, nl):
    for t in (f"s_cmp_lg_u32 s{S_W8}, 0", f"s_cbranch_scc1 {lab}", f"v_mbcnt_lo_u32_b32 v{tb}, -1, 0", f"v_lshl_add_u32 v{tb}, v{tb}, 2, {off}",
              f"s_mov_b64 exec, {(1 << nl) - 1}", f"global_load_dword v{ta}, v{tb}, s[{base}:{base+1}] sc0 sc1", "s_mov_b64 exec, -1"): L.append(raw(t))
    L.append(label(lab))
def apoll_check(L, lab, ta, tb, base, off, nl, need, slp):
    for t in (f"s_cmp_lg_u32 s{S_W8}, 0", f"s_cbranch_scc1 {lab}", f"s_mov_b64 exec, {(1 << nl) - 1}", f"v_cmp_gt_u32 vcc, {need}, v{ta}", "s_mov_b64 exec, -1",
              "s_nop 3", "s_cmp_eq_u64 vcc, 0", f"s_cbranch_scc1 {lab}"): L.append(raw(t))
    poll(L, lab + "p", ta, tb, base, off, nl, need, slp)
    L.append(label(lab))

def bload(u):
    it, uu = u // 16, u % 16
    L = []
    if u and u % 4 == 0: L.append(valu(f"v_add_u32 v{VOB}, {4096 if u != 16 else 65536 - 12288}, v{VOB}", [VOB], [VOB]))
    for qt in range(3):
        so = ['0', f"s{S_C1}", f"s{S_C2}"][qt]
        L.append(vload(f"buffer_load_dwordx4 {R(B_(u,qt),4)}, v{VOB}, s[{S_O}:{S_O+3}], {so} offen offset:{(u%4)*1024} sc1", [VOB], rng(B_(u, qt), 4)))
    return L
TOV, TWV, TDST = 55, 56, 63
def otouch_addrs(L):
    V = lambda t, rd, wr: L.append(valu(t, rd, wr))
    a, b = 60, 61
    V(f"v_min_u32 v{a}, 47, v{LN}", [LN], [a])
    V(f"v_lshrrev_b32 v{b}, 4, v{a}", [a], [b])
    V(f"v_lshlrev_b32 v{b}, 17, v{b}", [b], [b])
    V(f"v_and_b32 v{a}, 15, v{a}", [a], [a])
    V(f"v_lshl_add_u32 v{b}, v{a}, 7, v{b}", [a, b], [b])
    for t in (f"s_and_b32 s72, s{S_M}, 3", "s_lshl_b32 s72, s72, 11", f"s_add_u32 s72, s72, s{S_OBG}"): L.append(raw(t))
    V(f"v_add_u32 v{TOV}, s72, v{b}", [b], [TOV])
    V(f"v_min_u32 v{a}, 23, v{LN}", [LN], [a])
    V(f"v_mul_u32_u24 v{b}, 86, v{a}", [a], [b])
    V(f"v_lshrrev_b32 v{b}, 8, v{b}", [b], [b])
    V(f"v_mul_u32_u24 v{TWV}, 3, v{b}", [b], [TWV])
    V(f"v_sub_u32 v{a}, v{a}, v{TWV}", [a, TWV], [a])
    for t in (f"s_and_b32 s72, s{S_GBI}, 7", "s_lshl_b32 s72, s72, 2", f"s_add_u32 s72, s72, s{S_W}", "s_lshl_b32 s72, s72, 3"): L.append(raw(t))
    V(f"v_add_u32 v{b}, s72, v{b}", [b], [b])
    V(f"v_mul_u32_u24 v{b}, 1152, v{b}", [b], [b])
    V(f"v_lshl_add_u32 v{TWV}, v{a}, 7, v{b}", [a, b], [TWV])
def otouch(u0, o=True, w=True):
    st, uu = u0 // 16, u0 % 16
    L = []
    if o: L += [raw(f"s_mov_b32 s72, {st*65536 + uu*1024}"), raw(f"buffer_load_dword v{TDST}, v{TOV}, s[{S_O}:{S_O+3}], s72 offen sc1")]
    if w: L += [raw(f"s_mov_b32 s72, {(st*2048 + uu*32)*1152}"), raw(f"buffer_load_dword v{TDST}, v{TWV}, s[{S_WO}:{S_WO+3}], s72 offen")]
    for x in L: x.kind = 'salu'
    return L
def o_setup(L):
    op_addrs(L)
    otouch_addrs(L)
    L.append(valu(f"v_lshl_add_u32 v{VOB}, v{LN}, 4, s{S_OBG}", [LN], [VOB]))
    for u in range(3): L += bload(u)

def dummy(i, loc):
    L = [raw(f"s_add_u32 m0, s{S_W1024}, {loc}")]
    if i < 5:
        L += [raw(f"s_mul_i32 s72, s{S_DW}, 18432"), raw(f"s_add_u32 s72, s72, {i*4096}"),
              raw(f"buffer_load_dwordx4 v{VOL}, s[{S_WOW}:{S_WOW+3}], s72 offen lds")]
    else:
        L += [raw(f"s_mul_i32 s72, s{S_DW}, 9"), raw("s_lshr_b32 s72, s72, 2"), raw(f"s_add_u32 s72, s72, {i-5}"), raw("s_lshl_b32 s72, s72, 13"),
              raw("s_lshl_b32 s73, s7, 8"), raw("s_sub_u32 s72, s72, s73"), raw("s_add_u32 s72, s72, 4096"),
              raw(f"buffer_load_dwordx4 v{VOL}, s[{S_WQ}:{S_WQ+3}], s72 offen lds")]
    for x in L: x.kind = 'salu'
    return L
STK = [8, 9, 10, 11, 12, 13, 14, 15, 36, 37, 38, 39]
def program(cfg, ty):
    M = [marker('start')]
    earliest = {('K', 0): 'start', ('V', 0): 'start', ('K', 1): 'start', ('V', 1): 'start', ('P', 0): 'pok'}
    resume = {0: ('Q', 1), 1: ('O', 0)}
    fx = lambda L: [fence()] + L + [fence()]
    def fstamp(sem, n, pos):
        if cfg.steps == n and 0 <= pos < 12:
            sem.append(I("s_memrealtime s[76:77]", 'stamp')); sem.append(salu(f"s_mov_b32 s{STK[pos]}, s76"))
        if cfg.fine and cfg.fine[0] == n and pos in cfg.fine[1]:
            k_ = (8, 12, 36)[cfg.fine[1].index(pos)]
            sem.append(I(f"s_memtime s[{k_}:{k_+1}]", 'stamp')); sem.append(I(f"s_memrealtime s[{k_+2}:{k_+3}]", 'stamp'))
    def sst(sem, a, b):
        if cfg.stamps:
            L = []; stampm(L, cfg, a, b); sem.extend(nf(L))
    for it in range(2):
        lab = f"L{it}"
        sem = []; F = Rot(FR, NFR)
        st = []
        if it: o_addr(M, LB, 0); st = o_store_list(LB, 'Q', ('OST', 0))
        def qhook(sem, k, b):
            fstamp(sem, 2 * it, k)
            if 0 <= k < 100: fstamp(sem, 7 + it, k // 2)
            if k >= 1000:
                if k - 1000 in (2, 17): sem.append(I('', 'dsw', tag=('E', it, 0)))
                for i in [i for i in range(8) if cfg.dsch[i] == k - 1000 + 200 + 100 * it]: sem.extend(dummy(i, 36864))
                return
            if k == 0 and it:
                L = []; flag_read(L, 0, QT + 4); sem.extend(L)
            if k == -1 and it:
                L = []; flag_check(L, 0, QT + 4); sem.extend(fx(L))
            if k == 2 and it == 0:
                L = []; signal(L, QT, QT + 1, 1, lab + "i", atomic=True); sem.extend(nf(L))
            if k == 14 and it:
                b.extra = [('OST', 0)]
                L = []; signal(L, QT, QT + 1, 1, lab + "s"); sem.extend(nf(L))
        qproj(sem, cfg, it, it, qhook, F)
        sprinkle_b(sem, st, cfg.qst)
        sst(sem, QT, QT + 1)
        def ahook(sem, j, b):
            fstamp(sem, 2 * it + 1, j)
            if j < 3: fstamp(sem, 7 + it, 9 + j)
            fstamp(sem, 9 + it, j - 6)
            if j == 1: sem.append(marker(f'rate={cfg.valu_rate}'))
            if cfg.dwarm and j == 1: sem.append(I('', 'dsw', tag=('D', it, 0)))
            for i in ([i for i in range(8) if cfg.dsch[i] == j + 100 * it] if cfg.dwarm else []): sem.extend(dummy(i, 4 * SLOT))
            if cfg.dwarm and j == 13: sem.append(I('', 'dsw', tag=('D', it, 0)))
            if it == 1 and j == 3:
                L = [raw(f"s_lshl_b32 s74, s{S_GBI}, 2")]; apoll_issue(L, lab + "a", 0, 1, S_DBG, "s74", 1); sem.extend(nf(L))
            if it == 1 and j == 7:
                L = [raw(f"s_lshl_b32 s74, s{S_GBI}, 2")]; apoll_check(L, lab + "b", 0, 1, S_DBG, "s74", 1, 8, 64)
                L += [raw(f"s_lshr_b32 s74, s{S_M}, 2"), raw("s_lshl_b32 s74, s74, 4")]
                apoll_issue(L, lab + "c", 0, 1, S_FLG, "s74", 4); sem.extend(nf(L))
            if it == 1 and j == 11:
                L = [raw(f"s_lshr_b32 s74, s{S_M}, 2"), raw("s_lshl_b32 s74, s74, 4")]
                apoll_check(L, lab + "d", 0, 1, S_FLG, "s74", 4, 1, cfg.gslp); sem.extend(nf(L))
            if j == 14:
                L = []
                if it == 0:
                    if cfg.warm: touch_wq(L, QB, QB + 44, 1); nf(L)
                    qp_addrs(L, QB + 4)
                    sem.extend(L); return
                else:
                    o_setup(L)
                    if cfg.otouch: L += otouch(0)
                sem.extend(nf(L) + [marker('pok')])
            if j == 15: sem.append(marker(f'rate={cfg.rate2}'))
            if j == 16:
                L = []; flag_write(L, it, 62 - 2 * it, 63 - 2 * it); sem.extend(nf(L))
        attention(sem, it, False, ahook, F, cvt=True)
        epilogue_norm(sem, resume[it][0])
        M += schedule(sem, cfg.valu_rate, cfg.valu_burst)
        M.append(marker('flush'))
        M.append(label(f"L_after{it}"))
        M.append(waitall(vm=False))
        stampm(M, cfg, QT, QT + 1)
    o_addr(M, TA + 4, 1); st = o_store_list(TA + 4, 'O', ('OST', 1))
    sem = []; F = Rot(GFR, NGFR)
    plan = {}; prev_iu = 0
    for u in range(3, 32):
        la = 3 if u < 12 else cfg.bla
        iu = max(0, u - la)
        if u >= 12: iu = max(iu, cfg.bfree)
        if u >= 16: iu = max(iu, cfg.opoll + (u - 16) // 2)
        iu = max(iu, prev_iu); prev_iu = iu
        plan.setdefault(iu, []).append(u)
    for u in range(32):
        if u % cfg.obar == 0:
            b = barrier(0); sem.append(b)
        fstamp(sem, 4, u)
        if u % 2 == 0: fstamp(sem, 5, u // 2); fstamp(sem, 6, u // 2 - 5)
        if u == 0:
            L = []; flag_read(L, 1, TA + 5); sem.extend(L)
        if u == cfg.osig:
            b.extra = [('OST', 1)]
            L = []; signal(L, TA, TB, 2, "Los"); sem.extend(nf(L))
        if u == cfg.opoll - 2:
            L = [raw(f"s_lshr_b32 s74, s{S_M}, 2"), raw("s_lshl_b32 s74, s74, 4"),
                 valu(f"v_lshl_add_u32 v{TB+2}, v{LN}, 2, s74", [LN], [TB + 2]), raw("s_mov_b64 exec, 15"),
                 vload(f"global_load_dword v{TA+2}, v{TB+2}, s[{S_FLG}:{S_FLG+1}] sc0 sc1", [TB + 2], [TA + 2]), raw("s_mov_b64 exec, -1")]
            sem.extend(nf(L))
        if u == cfg.opoll:
            L = [valu(f"v_cmp_gt_u32 vcc, 2, v{TA+2}", [TA + 2], [], swr=['vcc']), raw("s_nop 4"), raw("s_and_b32 s72, vcc_lo, 15"), raw("s_cmp_eq_u32 s72, 0"), raw("s_cbranch_scc1 Loc"),
                 raw(f"s_lshr_b32 s74, s{S_M}, 2"), raw("s_lshl_b32 s74, s74, 4")]
            poll(L, "Lod", TA + 2, TB + 2, S_FLG, "s74", 4, 2, cfg.gslp); L.append(label("Loc"))
            sem.extend(nf(L))
            sst(sem, TA, TB)
        if u == 16: sst(sem, TA, TB)
        bl = []
        for uu in plan.get(u, []): bl += nf(bload(uu))
        for nu in range(9):
            if u == 0 and nu == 3:
                L = []; flag_check(L, 1, TA + 5); sem.extend(fx(L))
            fr = F.next()
            for h in range(2): sem.append(lds_read("ds_read_b64_tr_b16", fr + 2 * h, 2, ('P', u // 16, u % 16), 0, h * 4608 + nu * 32))
            for qt in range(3): sem.append(mfma16(OA(nu, qt), fr, B_(u, qt), None if u == 0 else OA(nu, qt)))
            k = (len(bl) + 8 - nu) // (9 - nu)
            sem.extend(bl[:k]); bl = bl[k:]
    sprinkle_b(sem, st, cfg.ost)
    M += schedule(sem)
    M.append(marker('flush'))
    stampm(M, cfg, TA, TB); stampm(M, cfg, TA, TB)
    if cfg.fine:
        M.append(raw("s_lshl_b32 s72, s2, 3")); M.append(raw(f"s_add_u32 s72, s72, s{S_W8}")); M.append(raw("s_lshl_b32 s72, s72, 6")); M.append(raw("s_add_u32 s72, s72, 0x7000028"))
        M.append(valu(f"v_mov_b32 v{LB+1}, s72", [], [LB + 1]))
        for q_, k_ in enumerate((8, 10, 12, 14, 36, 38)):
            M.append(valu(f"v_mov_b32 v{LB+2}, s{k_}", [], [LB + 2]))
            M.append(raw(f"global_store_dword v{LB+1}, v{LB+2}, s[{S_WS}:{S_WS+1}] offset:{4*q_}")); M.append(raw("s_nop 1"))
    if cfg.steps is not None:
        M.append(raw("s_lshl_b32 s72, s2, 3")); M.append(raw(f"s_add_u32 s72, s72, s{S_W8}")); M.append(raw("s_lshl_b32 s72, s72, 6")); M.append(raw("s_add_u32 s72, s72, 0x7020000"))
        M.append(valu(f"v_mov_b32 v{LB+1}, s72", [], [LB + 1]))
        for q_, k_ in enumerate(STK):
            M.append(valu(f"v_mov_b32 v{LB+2}, s{k_}", [], [LB + 2]))
            M.append(raw(f"global_store_dword v{LB+1}, v{LB+2}, s[{S_WS}:{S_WS+1}] offset:{4*q_}")); M.append(raw("s_nop 1"))
    M.append(raw("s_branch L_fin"))
    pre, M, loc = place_tiles(M, cfg, earliest)
    reissue = {}; cur = []
    done = set()
    for ins in M:
        if ins.kind == 'dma' and ins.tag not in cur: cur.append(ins.tag)
        if ins.kind == 'dsr' and ins.tag is not None: done.add(ins.tag)
        if ins.kind == 'label' and ins.text.startswith('L_after'):
            reissue[int(ins.text[7:-1])] = [(t, loc[t]) for t in cur if t not in done]
    return pre, M, reissue, resume

def gen(cfg):
    DROP[0] = cfg.drop; TFL[0] = cfg.tfl; MAP2[0] = cfg.map2
    P = []
    def sr(t): P.append(raw(t))
    V = lambda t, rd, wr: P.append(valu(t, rd, wr))
    sr("s_cmp_lt_u32 s2, 256"); sr("s_cbranch_scc1 L_go"); sr("s_endpgm"); P.append(label("L_go"))
    sr("s_load_dwordx16 s[16:31], s[0:1], 0")
    sr("s_load_dwordx8 s[32:39], s[0:1], 64")
    sr(f"s_load_dwordx2 s[{S_WS}:{S_WS+1}], s[0:1], 96")
    LANE = FR + 8
    V(f"v_lshrrev_b32 v{FR}, 6, v0", [0], [FR])
    V(f"v_and_b32 v{LANE}, 63, v0", [0], [LANE])
    P.append(valu(f"v_readfirstlane_b32 s{S_W8}, v{FR}", [FR], [], swr=[f"s{S_W8}"]))
    sr("s_and_b32 s3, s2, 7"); sr("s_lshr_b32 s4, s2, 3")
    if cfg.map2:
        sr(f"s_and_b32 s{S_M}, s4, 3"); sr("s_and_b32 s5, s3, 1"); sr("s_lshl_b32 s5, s5, 2"); sr(f"s_add_u32 s{S_M}, s{S_M}, s5")
        sr("s_lshr_b32 s5, s4, 2"); sr(f"s_lshr_b32 s{S_GBI}, s3, 1"); sr(f"s_lshl_b32 s{S_GBI}, s{S_GBI}, 3"); sr(f"s_add_u32 s{S_GBI}, s{S_GBI}, s5")
    else:
        sr(f"s_and_b32 s{S_M}, s4, 7")
        sr("s_lshr_b32 s5, s4, 3"); sr(f"s_lshl_b32 s{S_GBI}, s3, 2"); sr(f"s_add_u32 s{S_GBI}, s{S_GBI}, s5")
    sr(f"s_and_b32 s{S_W}, s{S_W8}, 3"); sr(f"s_lshr_b32 s6, s{S_W8}, 2")
    sr(f"s_lshl_b32 s7, s{S_M}, 1"); sr("s_add_u32 s7, s7, s6")
    sr(f"s_mul_i32 s{S_GB}, s6, {REG}")
    sr(f"s_lshl_b32 s{S_W1024}, s{S_W}, 10"); sr(f"s_add_u32 s{S_W1024}, s{S_W1024}, s{S_GB}")
    sr(f"s_mov_b32 s{S_C1}, 131072"); sr(f"s_mov_b32 s{S_C2}, 262144")
    if cfg.stamps:
        sr("s_lshl_b32 s72, s2, 3"); sr(f"s_add_u32 s72, s72, s{S_W8}"); sr("s_lshl_b32 s72, s72, 6"); sr(f"s_add_u32 s{S_SA}, s72, 0x7000000")
    dma_offs(P, FR)
    sr("s_waitcnt lgkmcnt(0)")
    sr(f"s_cmp_lt_u32 s{S_GBI}, 16")
    sr("s_cselect_b64 s[8:9], s[16:17], s[26:27]")
    sr("s_cselect_b64 s[10:11], s[18:19], s[28:29]")
    sr("s_cselect_b64 s[12:13], s[20:21], s[30:31]")
    sr("s_cselect_b64 s[14:15], s[22:23], s[32:33]")
    sr(f"s_cselect_b64 s[{S_WOW}:{S_WOW+1}], s[24:25], s[34:35]")
    sr(f"s_mov_b64 s[{S_DBG}:{S_DBG+1}], s[38:39]")
    sr(f"s_and_b32 s5, s{S_GBI}, 15"); sr("s_mul_i32 s72, s5, 221184")
    sr(f"s_add_u32 s{S_X}, s8, s72"); sr(f"s_addc_u32 s{S_X+1}, s9, 0")
    sr(f"s_mov_b32 s{S_X+2}, 221184"); sr(f"s_mov_b32 s{S_X+3}, 0x20000")
    sr("s_lshl_b32 s72, s7, 8")
    sr(f"s_add_u32 s{S_WQ}, s14, s72"); sr(f"s_addc_u32 s{S_WQ+1}, s15, 0")
    sr(f"s_sub_u32 s{S_WQ+2}, {576*8192}, s72"); sr(f"s_mov_b32 s{S_WQ+3}, 0x20000")
    sr(f"s_lshl_b32 s72, s{S_GBI}, 8"); sr(f"s_add_u32 s72, s72, {FLGWS}")
    sr(f"s_add_u32 s{S_FLG}, s{S_WS}, s72"); sr(f"s_addc_u32 s{S_FLG+1}, s{S_WS+1}, 0")
    a, b, c, d, e = FR, FR + 1, FR + 2, FR + 3, FR + 4
    if cfg.tcode:
        sr("s_getpc_b64 s[72:73]")
        sr(f"s_cmp_lg_u32 s{S_W8}, 1"); sr("s_cbranch_scc1 L_tc")
        V(f"v_min_u32 v{QT+2}, {cfg.tcode-1}, v{LANE}", [LANE], [QT+2])
        sr(f"s_mul_i32 s74, s4, {cfg.tcode}")
        V(f"v_add_u32 v{QT+2}, s74, v{QT+2}", [QT+2], [QT+2])
        V(f"v_lshlrev_b32 v{QT+2}, 7, v{QT+2}", [QT+2], [QT+2])
        sr(f"global_load_dword v{QT+3}, v{QT+2}, s[72:73]")
        P.append(label("L_tc"))
    signal(P, QT, QT + 1, 0, "L_z")
    stampm(P, cfg, QT, QT + 1)

    def rest(Pp, ty):
        def s(t): Pp.append(raw(t))
        VV = lambda t, rd, wr: Pp.append(valu(t, rd, wr))
        if cfg.warm and cfg.tstart:
            s(f"s_mov_b32 s{S_WOW+2}, {4096*1152}"); s(f"s_mov_b32 s{S_WOW+3}, 0x20000")
            touch_mall(Pp, ACC, QT + 6, ty)
        if cfg.warm and cfg.t0:
            touch(Pp, ACC, QT + 8, S_X, [f"s_lshl_b32 s72, s{S_M}, 3", f"s_add_u32 s72, s72, s{S_W8}"], 27, 0, 'lin')
            touch_wq(Pp, ACC + 4, QT + 9, ty)
        s("s_lshl_b32 s72, s5, 5"); s("s_add_u32 s72, s72, s7"); s("s_lshl_b32 s72, s72, 17")
        s(f"s_add_u32 s{S_K}, s10, s72"); s(f"s_addc_u32 s{S_K+1}, s11, 0")
        s(f"s_mov_b32 s{S_K+2}, {17*131072}"); s(f"s_mov_b32 s{S_K+3}, 0x20000")
        s(f"s_add_u32 s{S_V}, s12, s72"); s(f"s_addc_u32 s{S_V+1}, s13, 0")
        s(f"s_mov_b32 s{S_V+2}, {17*131072}"); s(f"s_mov_b32 s{S_V+3}, 0x20000")
        s(f"s_mul_i32 s72, s{S_GBI}, 1572864")
        s(f"s_add_u32 s{S_O}, s{S_WS}, s72"); s(f"s_addc_u32 s{S_O+1}, s{S_WS+1}, 0")
        s(f"s_mov_b32 s{S_O+2}, 1572864"); s(f"s_mov_b32 s{S_O+3}, 0x20000")
        s("s_mul_i32 s72, s2, 98304"); s(f"s_add_u32 s72, s72, {QWS}")
        s(f"s_add_u32 s{S_Q}, s{S_WS}, s72"); s(f"s_addc_u32 s{S_Q+1}, s{S_WS+1}, 0")
        s(f"s_mov_b32 s{S_Q+2}, 98304"); s(f"s_mov_b32 s{S_Q+3}, 0x20000")
        s(f"s_mul_i32 s{S_OBA}, s{S_W}, {3*131072}"); s("s_lshl_b32 s72, s7, 12"); s(f"s_add_u32 s{S_OBA}, s{S_OBA}, s72")
        s(f"s_mov_b32 s{S_THR}, 0x{f32bits(2.0**40):x}")
        sc = f32bits(math.log2(math.e) / math.sqrt(128.0))
        s(f"s_mov_b32 s{S_SC}, 0x{sc:x}"); s(f"s_mov_b32 s{S_SC+1}, 0x{sc:x}")
        s(f"s_mov_b32 s{S_WOW+2}, {4096*1152}"); s(f"s_mov_b32 s{S_WOW+3}, 0x20000")
        s(f"s_lshr_b32 s8, s{S_M}, 2"); s("s_lshl_b32 s8, s8, 1"); s("s_add_u32 s8, s8, s6")
        s(f"s_and_b32 s72, s{S_M}, 3"); s("s_mul_i32 s72, s72, 288")
        s(f"s_mul_i32 s73, s8, {512*1152}"); s("s_add_u32 s73, s73, s72")
        s(f"s_add_u32 s{S_WO}, s{S_WOW}, s73"); s(f"s_addc_u32 s{S_WO+1}, s{S_WOW+1}, 0")
        s(f"s_sub_u32 s{S_WO+2}, {4096*1152}, s73"); s(f"s_mov_b32 s{S_WO+3}, 0x20000")
        s("s_mul_i32 s73, s5, 192"); s(f"s_mul_i32 s75, s{S_W}, 48"); s("s_add_u32 s73, s73, s75"); s("s_mul_i32 s73, s73, 2304")
        s(f"s_lshr_b32 s75, s{S_GBI}, 4"); s("s_mul_i32 s75, s75, 1152"); s("s_add_u32 s73, s73, s75"); s("s_add_u32 s73, s73, s72")
        s(f"s_add_u32 s{S_OUT}, s36, s73"); s(f"s_addc_u32 s{S_OUT+1}, s37, 0")
        s(f"s_mov_b32 s{S_OUT+2}, {47*2304+288}"); s(f"s_mov_b32 s{S_OUT+3}, 0x20000")
        s(f"s_mul_i32 s{S_P1024}, s{S_W}, 2304"); s(f"s_add_u32 s{S_P1024}, s{S_P1024}, s{S_GB}")
        s(f"s_mul_i32 s{S_OBG}, s{S_W}, {3*131072}"); s("s_lshl_b32 s73, s8, 14"); s(f"s_add_u32 s{S_OBG}, s{S_OBG}, s73")
        s(f"s_lshl_b32 s72, s{S_GBI}, 2"); s(f"s_and_b32 s73, s{S_M}, 3"); s("s_add_u32 s72, s72, s73")
        s("s_lshl_b32 s72, s72, 3"); s(f"s_add_u32 s72, s72, s{S_W8}"); s("s_mul_i32 s72, s72, 14336"); s(f"s_add_u32 s72, s72, {PKWS}")
        s(f"s_add_u32 s{S_PK}, s{S_WS}, s72"); s(f"s_addc_u32 s{S_PK+1}, s{S_WS+1}, 0")
        s(f"s_mov_b32 s{S_PK+2}, 14336"); s(f"s_mov_b32 s{S_PK+3}, 0x20000")
        s(f"s_movk_i32 s{S_K4}, 4096"); s(f"s_movk_i32 s{S_K8}, 8192")
        lg = {32: 5, 16: 4, 8: 3, 4: 2}[cfg.pr]
        VV(f"v_lshrrev_b32 v{d}, {lg}, v{a}", [a], [d])
        VV(f"v_lshlrev_b32 v{d}, {lg+12}, v{d}", [d], [d])
        VV(f"v_and_b32 v{e}, {cfg.pr-1}, v{a}", [a], [e])
        VV(f"v_lshl_add_u32 v{d}, v{e}, 8, v{d}", [e, d], [d])
        VV(f"v_xor_b32 v{c}, v{a}, v{b}", [a, b], [c])
        VV(f"v_lshl_add_u32 v{VOK}, v{c}, 4, v{d}", [c, d], [VOK])
        VV(f"v_lshlrev_b32 v{c}, 4, v{c}", [c], [c])
        VV(f"v_lshl_add_u32 v{VOL}, v{a}, 8, v{c}", [a, c], [VOL])
        VV(f"v_and_b32 v{c}, 7, v{a}", [a], [c])
        VV(f"v_lshlrev_b32 v{c}, 1, v{c}", [c], [c])
        VV(f"v_xor_b32 v{c}, v{c}, v{b}", [c, b], [c])
        VV(f"v_lshl_add_u32 v{VOV}, v{c}, 4, v{d}", [c, d], [VOV])
        s(f"s_lshr_b32 s72, s{S_W}, 1"); s(f"s_mul_i32 s72, s72, {REG}"); s(f"s_and_b32 s73, s{S_W}, 1"); s(f"s_mul_i32 s73, s73, {48*128}"); s(f"s_add_u32 s{S_XB}, s72, s73")
        s("s_and_b32 s72, s2, 3"); s("s_lshl_b32 s73, s4, 2"); s("s_add_u32 s72, s72, s73"); s("s_lshl_b32 s72, s72, 1"); s(f"s_add_u32 s{S_DW}, s72, s6")
        if cfg.rot == 1: s("s_lshl_b32 s72, s4, 1"); s("s_add_u32 s72, s72, s6"); s("s_lshr_b32 s73, s4, 3"); s("s_add_u32 s72, s72, s73"); s("s_add_u32 s72, s72, s3")
        elif cfg.rot == 2: s("s_add_u32 s72, s4, s3")
        elif cfg.rot == 3: s("s_lshl_b32 s72, s2, 1"); s("s_add_u32 s72, s72, s6"); s("s_mul_i32 s72, s72, 0x9E3779B1"); s("s_lshr_b32 s72, s72, 28")
        elif cfg.rot == 4: s("s_lshl_b32 s72, s4, 1"); s("s_add_u32 s72, s72, s6")
        elif cfg.rot == 5: s("s_lshr_b32 s72, s4, 2"); s("s_lshl_b32 s72, s72, 1"); s("s_add_u32 s72, s72, s6")
        elif cfg.rot == 6: s("s_mul_i32 s72, s7, 5"); s("s_mul_i32 s73, s5, 3"); s("s_add_u32 s72, s72, s73")
        s("s_and_b32 s72, s72, 15"); s(f"s_lshl_b32 s{S_ROT}, s72, 13")
        qp_addrs(Pp, FR + 8)
        att_addrs(Pp, FR + 8)
        if cfg.prio:
            s(f"s_cmp_lt_u32 s{S_W8}, 4"); s("s_cbranch_scc1 L_np"); s(f"s_setprio {cfg.prio}"); Pp.append(label("L_np"))

    if cfg.types == 2:
        sr(f"s_bitcmp1_b32 s2, {cfg.tbit}"); sr("s_cbranch_scc1 L_type1")
    P = finish(P)
    reissue = {}; resume = {}; progs = []
    for ty in range(cfg.types):
        pre, Mn, ri, rs = program(cfg, ty)
        reissue.update(ri); resume.update(rs)
        Pp = []
        if ty: Pp.append(label("L_type1"))
        for g in pre: Pp.extend(g)
        rest(Pp, ty)
        progs.append(finish(Pp + Mn))
    E = [label("L_fin")]
    def se(t): E.append(raw(t))
    VE = lambda t, rd, wr: E.append(valu(t, rd, wr))
    E.append(waitall()); se("s_nop 7")
    wa, ra, oa, tg, xa = 4, 5, 7, 8, 9
    CP = 14 * 1024
    se(f"s_mul_i32 s72, s{S_W8}, {CP}"); se(f"s_xor_b32 s73, s{S_W8}, 4"); se(f"s_mul_i32 s73, s73, {CP}")
    VE(f"v_lshl_add_u32 v{wa}, v{LN}, 4, s72", [LN], [wa])
    VE(f"v_lshl_add_u32 v{ra}, v{LN}, 4, s73", [LN], [ra])
    VE(f"v_lshlrev_b32 v{xa}, 4, v{LN}", [LN], [xa])
    VE(f"v_and_b32 v{oa}, 15, v{LN}", [LN], [oa])
    VE(f"v_mul_u32_u24 v{oa}, 2304, v{oa}", [oa], [oa])
    VE(f"v_lshrrev_b32 v{tg}, 4, v{LN}", [LN], [tg])
    VE(f"v_lshl_add_u32 v{oa}, v{tg}, 3, v{oa}", [tg, oa], [oa])
    se(f"s_lshr_b32 s10, s{S_W}, 1"); se(f"s_lshr_b32 s11, s{S_M}, 2"); se("s_xor_b32 s10, s10, s11")
    E.append(barrier())
    se(f"s_cmp_ge_u32 s{S_W8}, 4"); se("s_cbranch_scc1 L_red1")
    for ks in range(2):
        own = list(range(14)) if ks == 0 else list(range(14, 27))
        oth = list(range(14, 27)) if ks == 0 else list(range(14))
        if ks: E.append(label("L_red1"))
        for k, t in enumerate(oth):
            E.append(ds_write(f"ds_write_b128 v{wa}, {R(OACC+4*t,4)} offset:{k*1024}", rng(OACC + 4 * t, 4) + [wa]))
        E.append(waitall(vm=False)); E.append(barrier())
        for k, t in enumerate(own):
            E.append(ds_read(f"ds_read_b128 {R(BST+4*k,4)}, v{ra} offset:{k*1024}", ra, rng(BST + 4 * k, 4)))
        def addall():
            for k, t in enumerate(own):
                x = OACC + 4 * t; y = BST + 4 * k
                for e_ in (0, 2): VE(f"v_pk_add_f32 {R(x+e_,2)}, {R(x+e_,2)}, {R(y+e_,2)}", [x + e_, x + e_ + 1, y + e_, y + e_ + 1], [x + e_, x + e_ + 1])
        addall()
        se("s_cmp_eq_u32 s10, 0"); se(f"s_cbranch_scc1 L_keep{ks}")
        for k, t in enumerate(own):
            if k % 4 == 0: se(f"s_movk_i32 s12, {k*1024}")
            E.append(vstore(f"buffer_store_dwordx4 {R(OACC+4*t,4)}, v{xa}, s[{S_PK}:{S_PK+3}], s12 offen offset:{(k%4)*1024} sc1", rng(OACC + 4 * t, 4) + [xa]))
        E.append(label(f"L_keep{ks}"))
        E.append(waitall()); E.append(barrier())
        signal(E, TA, TB, 3, f"L_sg{ks}")
        se("s_cmp_eq_u32 s10, 0"); se(f"s_cbranch_scc1 L_own{ks}")
        stampm(E, cfg, TA, TB)
        se("s_endpgm")
        E.append(label(f"L_own{ks}"))
        se(f"s_xor_b32 s74, s{S_M}, 4"); se("s_lshl_b32 s74, s74, 2")
        poll(E, f"L_xp{ks}", TA + 2, TB + 2, S_FLG, "s74", 1, 3, 2)
        for k, t in enumerate(own):
            if k % 4 == 0: se(f"s_movk_i32 s12, {k*1024}")
            E.append(vload(f"buffer_load_dwordx4 {R(BST+4*k,4)}, v{xa}, s[{S_PK}:{S_PK+3}], s12 offen offset:{(k%4)*1024} sc1", [xa], rng(BST + 4 * k, 4)))
        addall()
        for k, t in enumerate(own):
            x = OACC + 4 * t; nu, qt = t // 3, t % 3
            VE(f"v_cvt_pk_bf16_f32 v{x}, v{x}, v{x+1}", [x, x + 1], [x])
            VE(f"v_cvt_pk_bf16_f32 v{x+1}, v{x+2}, v{x+3}", [x + 2, x + 3], [x + 1])
            se(f"s_mov_b32 s12, {qt*16*2304}")
            E.append(vstore(f"buffer_store_dwordx2 {R(x,2)}, v{oa}, s[{S_OUT}:{S_OUT+3}], s12 offen offset:{nu*32}", [x, x + 1, oa], wide=False))
        stampm(E, cfg, TA, TB)
        se("s_endpgm")
        E.append(waitall())
    E.append(label("L_fallback"))
    E.append(waitall()); se("s_nop 7")
    se(f"s_lshl_b32 s{S_KOFF}, s{S_ITEM}, 21"); se(f"s_lshl_b32 s{S_WOFF}, s{S_ITEM}, 12")
    E.append(barrier())
    dma_offs(E, FR); qp_addrs(E, FR + 8)
    v = cfg.verbose; cfg.verbose = False
    att_addrs(E, FR + 8)
    sem = []; qproj(sem, cfg, 9, 9)
    for t_ in range(4): qcvt(sem, t_)
    pre3, fq, _ = place_tiles(schedule(sem, cfg.valu_rate, cfg.valu_burst), cfg)
    for g in pre3: E.extend(g)
    E.extend(fq)
    for qt in range(3): VE(f"v_mov_b32 v{NM(qt)+1}, 0xff800000", [], [NM(qt) + 1])
    se(f"s_mov_b32 s{S_CNT}, 0")
    E.append(label("L_fb_loop"))
    E.append(waitall()); E.append(barrier())
    for c_ in range(2):
        E.append(salu(f"s_add_u32 m0, s{S_W1024}, {c_*4096}", swr=['m0']))
        E.append(salu(f"s_add_u32 s{S_TMP}, s{S_CNT}, {rowoff(16*c_, cfg.pr)}"))
        E.append(salu(f"s_add_u32 s{S_TMP}, s{S_TMP}, s{S_KOFF}"))
        E.append(dma(f"buffer_load_dwordx4 v{VOK}, s[{S_K}:{S_K+3}], s{S_TMP} offen lds", [VOK]))
    E.append(waitall()); E.append(barrier())
    for kt in range(2):
        for t in range(4):
            fr = ACC + (kt * 4 + t) * 4
            E.append(ds_read(f"ds_read_b128 {R(fr,4)}, v{KAD+t} offset:{kt*4096}", KAD + t, rng(fr, 4)))
    for kt in range(2):
        for t in range(4):
            fr = ACC + (kt * 4 + t) * 4
            for qt in range(3):
                d_ = S_(XB, kt, qt)
                E.append(mfma16(d_, fr, Q_(qt, t), d_ if t else None))
    for qt in range(3):
        m = NM(qt) + 1
        for kt in range(2):
            a_ = S_(XB, kt, qt)
            VE(f"v_max3_f32 v{m}, v{m}, v{a_}, v{a_+1}", [m, a_, a_ + 1], [m])
            VE(f"v_max3_f32 v{m}, v{m}, v{a_+2}, v{a_+3}", [m, a_ + 2, a_ + 3], [m])
    se("s_nop 7"); se(f"s_add_u32 s{S_CNT}, s{S_CNT}, {cfg.pr*256}"); se(f"s_cmp_lt_u32 s{S_CNT}, {cfg.pr*256*16}"); se("s_cbranch_scc1 L_fb_loop")
    for qt in range(3): xlane_max(E, NM(qt) + 1, NM(qt) + 2)
    for qt in range(3): set_negm(E, qt, NM(qt) + 1)
    E.append(waitall()); E.append(barrier())
    sem = []
    attention(sem, 9, True)
    pre2, fb, _ = place_tiles(schedule(sem, cfg.valu_rate, cfg.valu_burst), cfg)
    cfg.verbose = v
    for g in pre2: E.extend(g)
    E.extend(fb)
    E.append(waitall()); se("s_nop 7"); E.append(barrier())
    for r in sorted(reissue):
        se(f"s_cmp_eq_u32 s{S_ITEM}, {r}"); se(f"s_cbranch_scc0 L_fbn{r}")
        if resume[r][0] == 'O': o_setup(E)
        else: qp_addrs(E, FR + 8)
        epilogue_norm(E, resume[r][0])
        se(f"s_lshl_b32 s73, s{S_W8}, 2"); se(f"s_add_u32 s73, s73, s{S_FL}")
        VE(f"v_mov_b32 v{FR}, s73", [], [FR]); VE(f"v_mov_b32 v{FR+1}, 0", [], [FR + 1])
        E.append(ds_write(f"ds_write_b32 v{FR}, v{FR+1}", [FR, FR + 1]))
        for t, l in reissue[r]:
            for g in tile_dma(t, l, cfg): E.extend(g)
        E.append(waitall()); se("s_nop 7")
        se(f"s_branch L_after{r}")
        E.append(label(f"L_fbn{r}"))
    se("s_endpgm")
    return P + progs[0] + finish(E) + (progs[1] if len(progs) > 1 else [])

import re
def compress(text):
    out = []
    pat = re.compile(r"v_mfma_f32_16x16x32_bf16 v\[(\d+):\d+\], v\[(\d+):\d+\], v\[(\d+):\d+\], (0|v\[(\d+):\d+\])$")
    pt = re.compile(r"ds_read_b64_tr_b16 v\[(\d+):\d+\], v(\d+) offset:(\d+)$")
    for l in text.splitlines():
        s = l.strip()
        m = pat.match(s)
        if m:
            if m.group(4) == '0': out.append(f"MZ {m.group(1)},{m.group(2)},{m.group(3)}")
            elif m.group(5) == m.group(1): out.append(f"MA {m.group(1)},{m.group(2)},{m.group(3)}")
            else: out.append(f"MC {m.group(1)},{m.group(2)},{m.group(3)},{m.group(5)}")
            continue
        m = pt.match(s)
        if m: out.append(f"TR {m.group(1)},{m.group(2)},{m.group(3)}"); continue
        out.append(s)
    return "\n".join(out) + "\n"
MACROS = r""".macro MA d,a,b
v_mfma_f32_16x16x32_bf16 v[\d:\d+3], v[\a:\a+3], v[\b:\b+3], v[\d:\d+3]
.endm
.macro MZ d,a,b
v_mfma_f32_16x16x32_bf16 v[\d:\d+3], v[\a:\a+3], v[\b:\b+3], 0
.endm
.macro MC d,a,b,c
v_mfma_f32_16x16x32_bf16 v[\d:\d+3], v[\a:\a+3], v[\b:\b+3], v[\c:\c+3]
.endm
.macro TR d,a,o
ds_read_b64_tr_b16 v[\d:\d+1], v\a offset:\o
.endm
"""

if __name__ == "__main__":
    import sys
    NAME = "concat_heads__mha_block_cached__mha_block_cached__near_ridge"
    cfg = Cfg(); path = f"cdna_kernels/{NAME}.s"
    for a in sys.argv[1:]:
        if a.startswith("out="): path = a[4:]; continue
        k, v = a.split("=", 1)
        try: v = eval(v)
        except Exception: pass
        setattr(cfg, k, v)
    ref = open(f"cdna_kernels/{NAME}.s.ref").read()
    head = []
    for line in ref.splitlines():
        if not line.startswith(';'): break
        if '@launch' not in line: head.append(line)
    P = gen(cfg)
    nm = NAME + "_kernel"
    s = "\n".join(head) + "\n; @launch grid=(256,1,1) block=(512,1,1) lds=163840\n"
    s += '.amdgcn_target "amdgcn-amd-amdhsa--gfx950"\n' + MACROS + '.text\n'
    s += f".globl {nm}\n.p2align 8\n.type {nm},@function\n{nm}:\n" + compress(render(P))
    s += f""".section .rodata,"a"
.p2align 6
.amdhsa_kernel {nm}
  .amdhsa_next_free_vgpr 256
  .amdhsa_next_free_sgpr 100
  .amdhsa_accum_offset 256
  .amdhsa_group_segment_fixed_size 0
  .amdhsa_kernarg_size 104
  .amdhsa_user_sgpr_count 2
  .amdhsa_user_sgpr_kernarg_segment_ptr 1
  .amdhsa_system_sgpr_workgroup_id_x 1
.end_amdhsa_kernel
"""
    open(path, "w").write(s)
    print("instrs", len(P), "bytes", len(s))
```
